```python
import torch

def _softmax(x, axis=-1):
    return torch.softmax(x, dim=axis)
def _gelu(x):
    return torch.nn.functional.gelu(x, approximate="tanh")
def _silu(x):
    return torch.nn.functional.silu(x)
def _sigmoid(x):
    return torch.sigmoid(x)
def _layernorm(x, axis=-1, eps=1e-5):
    m = x.mean(dim=axis, keepdim=True)
    v = x.var(dim=axis, keepdim=True, unbiased=False)
    return (x - m) / torch.sqrt(v + eps)
def _scatter_add(tgt, idx, src, axis=0):
    return tgt.clone().index_add_(axis, idx, src)
def _segment_sum(src, seg, n):
    out = torch.zeros((n,) + src.shape[1:], dtype=src.dtype)
    return out.index_add_(0, seg, src)
def _pad(x, pw):
    flat = tuple(v for pair in reversed(pw) for v in pair)
    return torch.nn.functional.pad(x, flat)

kernel_name = 'gated_mix__linear_attn_block__mixer_s_mlp__prompt'

def setup_inputs():

    _w = (lambda a: (lambda t: t.to(torch.bfloat16) if t.is_floating_point() else t)(torch.as_tensor(a)))
    def _A_setup():
        B, S, D = 1, 2048, 640
        return {
            "x": _w((lambda *s: torch.randn(*s, dtype=torch.bfloat16) * 0.05)(B, S, D)),
            "wqkv": _w((lambda *s: torch.randn(*s, dtype=torch.bfloat16) * 3.2)(D, 3 * D)),
            "wo": _w((lambda *s: torch.randn(*s, dtype=torch.bfloat16) * 1.6)(D, D)),
        }
    _A_in = _A_setup()

    def _B_setup():
        B, S, D, F = 1, 2048, 640, 1728
        return {
            "x":  _w((lambda *s: torch.randn(*s, dtype=torch.bfloat16) * 0.05)(B, S, D)),
            "w1": _w((lambda *s: torch.randn(*s, dtype=torch.bfloat16) * 3.2)(D, D) * (D ** -0.5)),
            "w2": _w((lambda *s: torch.randn(*s, dtype=torch.bfloat16) * 3.2)(D, D) * (D ** -0.5)),
            "w3": _w((lambda *s: torch.randn(*s, dtype=torch.bfloat16) * 3.2)(D, F) * (D ** -0.5)),
            "w4": _w((lambda *s: torch.randn(*s, dtype=torch.bfloat16) * 3.2)(F, D) * (F ** -0.5)),
        }
    _B_in = _B_setup()

    return {
        "A_x": _A_in["x"],
        "A_wqkv": _A_in["wqkv"],
        "A_wo": _A_in["wo"],
        "B_x": _B_in["x"],
        "B_w1": _B_in["w1"],
        "B_w2": _B_in["w2"],
        "B_w3": _B_in["w3"],
        "B_w4": _B_in["w4"],
        "gate_w": _w((lambda *s: torch.randn(*s, dtype=torch.bfloat16) * 0.05)(640) * 16.0),
    }

def reference(A_x, A_wqkv, A_wo, B_x, B_w1, B_w2, B_w3, B_w4, gate_w):
    def _A_ref(x, wqkv, wo):
        B, S, D = x.shape
        H = 32; Dh = D // H
        qkv = (lambda x, *d: x.permute(*d))((x @ wqkv).reshape(B, S, 3, H, Dh), 2, 0, 3, 1, 4)
        q, k, v = qkv[0], qkv[1], qkv[2]
        phi = lambda t: torch.where(t > 0, t + 1, torch.exp(t)) + 1e-6
        pq, pk = phi(q), phi(k)
        kv = torch.einsum("bhsd,bhse->bhde", pk, v)
        z = torch.einsum("bhsd->bhd", pk)
        num = torch.einsum("bhqd,bhde->bhqe", pq, kv)
        den = torch.einsum("bhqd,bhd->bhq", pq, z)[..., None] + 1e-6
        o = num / den
        return (lambda x, *d: x.permute(*d))(o, 0, 2, 1, 3).reshape(B, S, D) @ wo

    def _B_ref(x, w1, w2, w3, w4):
        B, S, D = x.shape
        h = _gelu(_layernorm(x, axis=-1) @ w1)
        c = D // 4
        g0 = _pad(h[:, :, 0*c:1*c], ((0, 0), (1, 0), (0, 0)))[:, :S, :]
        g1 = _pad(h[:, :, 1*c:2*c], ((0, 0), (0, 1), (0, 0)))[:, 1:, :]
        g2 = _pad(h[:, :, 2*c:3*c], ((0, 0), (2, 0), (0, 0)))[:, :S, :]
        g3 = _pad(h[:, :, 3*c:   ], ((0, 0), (0, 2), (0, 0)))[:, 2:, :]
        hs = torch.concatenate([g0, g1, g2, g3], axis=-1) @ w2
        x1 = x + hs
        h2 = _gelu(_layernorm(x1, axis=-1) @ w3) @ w4
        return x1 + h2

    x = A_x
    g = _sigmoid((x * gate_w).sum(-1, keepdims=True))
    a = _A_ref(x, A_wqkv, A_wo)
    b = _B_ref(x, B_w1, B_w2, B_w3, B_w4)
    return g * a + (1 - g) * b
```

```python
import re

def v(n, c=1):
    return f"v{n}" if c == 1 else f"v[{n}:{n+c-1}]"
def s(n, c=1):
    return f"s{n}" if c == 1 else f"s[{n}:{n+c-1}]"

class Asm:
    def __init__(self):
        self.lines = []
        self.nlab = 0
    def __call__(self, txt):
        for l in txt.split("\n"):
            l = l.strip()
            if l:
                self.lines.append("    " + l if not l.endswith(":") else l)
    def label(self, name):
        self.lines.append(name + ":")
    def newlabel(self, base):
        self.nlab += 1
        return f"L_{base}_{self.nlab}"
    def comment(self, c):
        self.lines.append("    ; " + c)
    def raw(self, l):
        self.lines.append(l)
    def text(self):
        return "\n".join(self.lines) + "\n"

_REG = re.compile(r"^(v|s|a)(\d+)$")
_RNG = re.compile(r"^(v|s|a)\[(\d+):(\d+)\]$")
def regs(tok):
    tok = tok.strip()
    neg = False
    tok = tok.lstrip("-")
    if tok.startswith("abs(") and tok.endswith(")"):
        tok = tok[4:-1]
    if tok.startswith("|") and tok.endswith("|"):
        tok = tok[1:-1]
    m = _REG.match(tok)
    if m: return {(m.group(1), int(m.group(2)))}
    m = _RNG.match(tok)
    if m: return {(m.group(1), i) for i in range(int(m.group(2)), int(m.group(3)) + 1)}
    if tok == "vcc": return {("s", 106), ("s", 107)}
    if tok == "vcc_lo": return {("s", 106)}
    if tok == "vcc_hi": return {("s", 107)}
    if tok == "m0": return {("s", 124)}
    if tok == "exec": return {("s", 126), ("s", 127)}
    if tok == "exec_lo": return {("s", 126)}
    if tok == "exec_hi": return {("s", 127)}
    return set()

TRANS = ("v_exp_f32", "v_log_f32", "v_rcp_f32", "v_rsq_f32", "v_sqrt_f32", "v_sin_f32", "v_cos_f32")
class I:
    __slots__ = ("txt","mn","ops","cls","dst","src","ws","trans","dpp","perm","lds","passes","mA","mB","mC","target","uncond","end","storedata","wide","lane","idx")
def parse(line):
    t = line.split(";")[0].strip()
    if not t or t.startswith("."): return None
    if t.endswith(":"): return ("label", t[:-1])
    sp = t.split(None, 1)
    mn = sp[0]; rest = sp[1] if len(sp) > 1 else ""
    ops = []; cur = ""; d = 0
    for ch in rest:
        if ch in "[(": d += 1
        if ch in "])": d -= 1
        if ch == "," and d == 0: ops.append(cur.strip()); cur = ""
        else: cur += ch
    if cur.strip(): ops.append(cur.strip())
    mods = ""
    if ops:
        parts = ops[-1].split(None, 1)
        if len(parts) > 1 and not ops[-1].startswith("hwreg"):
            ops[-1] = parts[0]; mods = parts[1]
        elif len(parts)==1 and (":" in parts[0] and not parts[0].startswith(("v[","s[","a["))):
            pass
    i = I(); i.txt = t; i.mn = mn; i.ops = ops
    i.dst = set(); i.src = set(); i.ws = 1; i.trans = False; i.dpp = False; i.perm = False; i.lds = False
    i.passes = 0; i.mA = set(); i.mB = set(); i.mC = set(); i.target = None; i.uncond = False; i.end = False
    i.storedata = set(); i.wide = False; i.lane = False
    base = re.sub(r"_(e32|e64|dpp|sdwa)$", "", mn)
    R = lambda k: regs(ops[k]) if k < len(ops) else set()
    allsrc = lambda a: set().union(*[regs(o) for o in ops[a:]]) if len(ops) > a else set()
    if mn.startswith("v_mfma"):
        i.cls = "mfma"; i.dst = R(0); i.mA = R(1); i.mB = R(2); i.mC = R(3); i.src = i.mA | i.mB | i.mC
        i.passes = 8 if "32x32x16" in mn else 4
    elif mn.startswith("v_"):
        i.cls = "valu"
        i.trans = base in TRANS
        i.dpp = ("row_" in mods or "quad_perm" in mods or "row_" in t or "quad_perm" in t or mn.endswith("_dpp"))
        if base.startswith("v_permlane"):
            i.perm = True; i.dst = R(0) | R(1); i.src = R(0) | R(1)
        elif base.startswith("v_cmp"):
            i.dst = R(0); i.src = allsrc(1)
        elif base in ("v_readfirstlane_b32", "v_readlane_b32"):
            i.lane = True; i.dst = R(0); i.src = allsrc(1)
        elif base in ("v_add_co_u32", "v_sub_co_u32", "v_subrev_co_u32"):
            i.dst = R(0) | R(1); i.src = allsrc(2)
        elif base in ("v_addc_co_u32", "v_subb_co_u32"):
            i.dst = R(0) | R(1); i.src = allsrc(2)
        elif base == "v_nop":
            pass
        else:
            i.dst = R(0); i.src = allsrc(1)
            if base in ("v_fmac_f32", "v_dot2c_f32_bf16", "v_pk_fmac_f16", "v_fmac_f16") or (i.dpp):
                i.src |= R(0)
            if base == "v_cndmask_b32" and len(ops) == 3:
                i.src |= regs("vcc")
            if base == "v_writelane_b32": i.src |= R(0)
    elif mn.startswith(("buffer_", "global_", "flat_")):
        i.cls = "vmem"
        lds = " lds" in (" " + mods) or mn.startswith("global_load_lds") or t.endswith(" lds")
        i.lds = lds
        if mn.startswith("buffer_load"):
            if lds: i.src = allsrc(0) | regs("m0")
            else: i.dst = R(0); i.src = allsrc(1)
        elif mn.startswith("buffer_store"):
            i.src = allsrc(0); i.storedata = R(0); i.wide = mn.endswith(("x3", "x4"))
        elif mn.startswith("buffer_atomic"):
            i.src = allsrc(0); i.storedata = R(0)
            if "sc0" in mods: i.dst = R(0)
        elif mn.startswith("global_load"):
            if lds: i.src = allsrc(0) | regs("m0")
            else: i.dst = R(0); i.src = allsrc(1)
        elif mn.startswith("global_store"):
            i.src = allsrc(0); i.storedata = R(1); i.wide = mn.endswith(("x3", "x4"))
        elif mn.startswith("global_atomic"):
            i.src = allsrc(0)
        else:
            i.src = allsrc(0)
    elif mn.startswith("ds_"):
        i.cls = "ds"
        if mn.startswith(("ds_read", "ds_bpermute", "ds_permute", "ds_swizzle")):
            i.dst = R(0); i.src = allsrc(1)
        else:
            i.src = allsrc(0)
    elif mn.startswith("s_"):
        i.cls = "salu"
        if mn == "s_nop": i.ws = int(ops[0], 0) + 1; i.cls = "nop"
        elif mn in ("s_waitcnt", "s_barrier", "s_setprio", "s_sleep"): i.cls = "misc"
        elif mn == "s_endpgm": i.end = True; i.cls = "misc"
        elif mn == "s_branch": i.target = ops[0]; i.uncond = True; i.cls = "misc"
        elif mn.startswith("s_cbranch"): i.target = ops[0]; i.cls = "misc"
        elif mn.startswith("s_cmp"): i.src = allsrc(0)
        elif mn.startswith(("s_load", "s_buffer_load")): i.dst = R(0); i.src = allsrc(1); i.cls = "smem"
        elif mn in ("s_memtime","s_memrealtime"): i.dst = R(0); i.cls="smem"
        elif "saveexec" in mn: i.dst = R(0) | regs("exec"); i.src = allsrc(1) | regs("exec")
        else: i.dst = R(0); i.src = allsrc(1)
    else:
        raise ValueError("unknown instr: " + t)
    return i

def check(text, verbose=True):
    ins = []; lab = {}
    for ln in text.split("\n"):
        p = parse(ln)
        if p is None: continue
        if isinstance(p, tuple): lab[p[1]] = len(ins); continue
        p.idx = len(ins); ins.append(p)
    n = len(ins)
    def succ(i):
        x = ins[i]
        if x.end: return []
        r = []
        if x.target is not None:
            if x.target in lab: r.append(lab[x.target])
            if x.uncond: return r
        if i + 1 < n: r.append(i + 1)
        return r
    V = lambda st: {r for r in st if r[0] in "va"}
    S = lambda st: {r for r in st if r[0] == "s"}
    probs = []
    def need(p, c):
        w = 0; why = ""
        def up(x, y):
            nonlocal w, why
            if x > w: w = x; why = y
        if p.cls == "valu":
            pv = V(p.dst); ps = S(p.dst)
            if c.cls == "mfma" and pv & c.src: up(2, "valu->mfma")
            if c.cls == "valu":
                if c.lane and pv & V(c.src): up(1, "valu->readlane")
                if c.dpp and pv & V(c.src): up(2, "valu->dpp")
                if c.perm and pv & c.src: up(2, "valu->permlane")
                if p.trans and (pv & c.src) : up(1, "trans->valu")
                if ps & S(c.src): up(2, "valu sgpr->valu")
                if c.lane and len(c.ops) > 2 and ps & regs(c.ops[2]): up(4, "valu sgpr->lanesel")
            if c.cls == "vmem" and ps & S(c.src): up(5, "valu sgpr->vmem")
            if p.trans and c.cls in ("vmem","ds","mfma") and (pv & c.src): up(1, "trans->mem(conservative)")
        if p.cls == "mfma":
            d = p.dst; big = p.passes == 8
            if c.cls == "mfma":
                if d & (c.mA | c.mB): up(12 if big else 8, "mfma D->A/B")
                if d & c.mC and not (d == c.mC and c.passes == p.passes): up(10 if big else 6, "mfma D->C overlap")
                if d & c.dst and not (d == c.dst): up(10 if big else 6, "mfma D->D overlap")
            elif c.cls == "valu":
                if d & (c.src | c.dst): up(12 if big else 8, "mfma D->valu")
                if p.mC & c.dst and not (d & c.dst): up(7 if big else 3, "mfma C WAR valu")
            elif c.cls in ("vmem", "ds"):
                if d & (c.src | c.dst): up(12 if big else 8, "mfma D->mem")
        if p.cls in ("salu",) and ("s", 124) in p.dst and c.cls == "vmem" and c.lds: up(1, "m0->ldsdma")
        if p.cls == "vmem" and p.wide and p.storedata:
            if c.cls == "valu" and p.storedata & c.dst: up(2, "store data WAR valu")
            elif c.cls in ("ds","vmem","mfma") and p.storedata & c.dst: up(1, "store data WAR")
        return w, why
    for i, p in enumerate(ins):
        if p.cls not in ("valu", "mfma", "salu", "vmem"): continue
        if p.cls == "salu" and ("s", 124) not in p.dst: continue
        if p.cls == "vmem" and not p.wide: continue
        maxw = 12
        stack = [(j, 0) for j in succ(i)]
        seen = {}
        while stack:
            j, dist = stack.pop()
            if dist >= maxw: continue
            if seen.get(j, 99) <= dist: continue
            seen[j] = dist
            c = ins[j]
            w, why = need(p, c)
            if w > dist:
                probs.append((i, j, w, dist, why))
            for k in succ(j): stack.append((k, dist + c.ws))
    if verbose:
        for (i, j, w, d, why) in probs[:40]:
            print(f"HAZARD {why}: need {w} have {d}\n   P[{i}] {ins[i].txt}\n   C[{j}] {ins[j].txt}")
        print(f"hazard check: {n} instrs, {len(probs)} problems")
    return probs
```

```python
from asmlib import *
NAME = "gated_mix__linear_attn_block__mixer_s_mlp__prompt"
KA_AX, KA_WQKV, KA_WO, KA_BX, KA_W1, KA_W2, KA_W3, KA_W4, KA_GW, KA_OUT, KA_DBG, KA_WS = [8*i for i in range(12)]
CSTR = 32768
CM   = 80 * CSTR
WS_PQ  = 0
WS_H   = CM
WS_X1  = 2 * CM
WS_PQN = 3 * CM
WS_A   = 4 * CM
WS_H2  = 5 * CM
WS_WP  = WS_H2 + 216 * CSTR
WS_KVS = WS_WP + 819200
WS_ZS  = WS_KVS + 16 * 32 * 1664
WS_G   = WS_ZS + 16 * 640 * 4
WS_STAMP = WS_G + 8192
WS_END = WS_STAMP + 4*65536
SRD3 = 0x20000

def srd(a, dst, ptr, nbytes, off=0):
    if off:
        a(f"s_add_u32 s{dst}, s{ptr}, {off}")
        a(f"s_addc_u32 s{dst+1}, s{ptr+1}, 0")
    else:
        a(f"s_mov_b32 s{dst}, s{ptr}")
        a(f"s_mov_b32 s{dst+1}, s{ptr+1}")
    a(f"s_mov_b32 s{dst+2}, {nbytes}")
    a(f"s_mov_b32 s{dst+3}, {SRD3:#x}")

def kernel_head(a, name):
    a.raw(f".globl {name}")
    a.raw(".p2align 8")
    a.raw(f".type {name},@function")
    a.raw(f"{name}:")

def kd(name, vgpr=256, sgpr=96):
    return f""".p2align 6
.amdhsa_kernel {name}
  .amdhsa_next_free_vgpr {vgpr}
  .amdhsa_next_free_sgpr {sgpr}
  .amdhsa_accum_offset {(vgpr+3)//4*4}
  .amdhsa_group_segment_fixed_size 0
  .amdhsa_kernarg_size 96
  .amdhsa_user_sgpr_count 2
  .amdhsa_user_sgpr_kernarg_segment_ptr 1
  .amdhsa_system_sgpr_workgroup_id_x 1
.end_amdhsa_kernel
"""
import struct, math
def f32(x):
    return "0x%08x" % struct.unpack("<I", struct.pack("<f", x))[0]
LOG2E = 1.4426950408889634
GC0 = -2.0 * LOG2E * math.sqrt(2.0 / math.pi)
GC1 = GC0 * 0.044715

def csel(a, dst, x, y):
    a(f"s_mov_b32 {dst}, {y}")
    a(f"s_cselect_b32 {dst}, {x}, {dst}")

import os
STAMP = os.environ.get("STAMP","0") in ("1","2")
STAMPOP = "s_memtime" if os.environ.get("STAMP","0")=="2" else "s_memrealtime"
def stamp(a, n):
    if STAMP: a(f"{STAMPOP} s[{64+2*n}:{65+2*n}]")
def stamp_flush(a, kidx, wave_sgpr, nst, ws_srd=32, vt=250):
    if not STAMP: return
    a("s_waitcnt vmcnt(0)")
    a(f"{STAMPOP} s[{64+2*nst}:{65+2*nst}]")
    a("s_waitcnt lgkmcnt(0)")
    a(f"s_lshl_b32 s90, s2, 3\ns_add_u32 s90, s90, {wave_sgpr}\ns_lshl_b32 s90, s90, 5")
    a(f"s_add_u32 s90, s90, {WS_STAMP + kidx*65536}")
    a(f"v_mov_b32 v{vt}, s90")
    for n in range(7):
        a(f"v_mov_b32 v{vt+1}, s{64+2*n}")
        a(f"buffer_store_dword v{vt+1}, v{vt}, s[{ws_srd}:{ws_srd+3}], 0 offen offset:{4*n}")
        a("s_nop 0")

def lane_group_sum(a, rs, tmp):
    for op in ("v_permlane16_swap_b32", "v_permlane32_swap_b32"):
        for k, r in enumerate(rs): a(f"v_mov_b32 v{tmp+k}, v{r}")
        a("s_nop 1")
        for k, r in enumerate(rs): a(f"{op} v{tmp+k}, v{r}")
        a("s_nop 1")
        for k, r in enumerate(rs): a(f"v_add_f32 v{r}, v{r}, v{tmp+k}")
        a("s_nop 0")
```

```python
from common import *

A_RING = 0
B_RING = 65536
MISC   = 147456
ST_OFF = 0
CS_OFF = 1024
K1_LDS = 163840
NST = 10

def gen_k1(a):
    name = "k1_kernel"
    kernel_head(a, name)
    END = "L_k1_end"
    a(f"s_cmp_ge_u32 s2, 256")
    a(f"s_cbranch_scc1 {END}")
    stamp(a, 0)
    a(f"s_load_dwordx4 s[4:7], s[0:1], {KA_AX}")
    a(f"s_load_dwordx2 s[10:11], s[0:1], {KA_W1}")
    a(f"s_load_dwordx2 s[12:13], s[0:1], {KA_WS}")
    a("""
    s_and_b32 s16, s2, 7
    s_lshr_b32 s17, s2, 3
    s_and_b32 s18, s16, 3
    s_lshr_b32 s19, s16, 2
    s_lshl_b32 s19, s19, 3
    s_and_b32 s20, s17, 7
    s_add_u32 s20, s20, s19
    s_lshr_b32 s21, s17, 3
    v_lshrrev_b32 v1, 6, v0
    v_and_b32 v0, 63, v0
    """)
    a("v_readfirstlane_b32 s22, v1")
    a("""
    s_lshl_b32 s3, s18, 2
    s_add_u32 s3, s3, s21
    s_mul_i32 s23, s3, 160
    s_add_u32 s23, s23, 1280
    s_mul_i32 s16, s21, 320
    s_cmp_lt_u32 s18, 2
    s_cselect_b32 s23, s23, s16
    s_cselect_b32 s14, 1120, 0
    s_cmp_eq_u32 s18, 3
    s_mov_b32 s15, 3840
    s_cselect_b32 s15, 1280, s15
    s_waitcnt lgkmcnt(0)
    s_cselect_b64 s[6:7], s[10:11], s[6:7]
    s_mov_b32 s16, 2457600
    s_cselect_b32 s16, 819200, s16
    """)
    stamp(a, 6)
    srd(a, 24, 4, 2621440)
    a("s_mov_b32 s28, s6\ns_mov_b32 s29, s7\ns_mov_b32 s30, s16")
    a(f"s_mov_b32 s31, {SRD3:#x}")
    srd(a, 32, 12, WS_END)
    a("s_cmp_ge_u32 s22, 4")
    a("s_cbranch_scc1 L_k1_loader")
    compute(a, END)
    loader(a, END)
    a.label(END)
    a("s_endpgm")
    return name

def loader(a, END):
    a.label("L_k1_loader")
    VA = 2
    VB = 6
    T = 11
    a("s_sub_u32 s22, s22, 4")
    a(f"""
    v_lshrrev_b32 v{T}, 3, v0
    v_mul_u32_u24 v{T}, 1280, v{T}
    v_lshrrev_b32 v{T+1}, 4, v0
    v_and_b32 v{T+2}, 7, v0
    v_xor_b32 v{T+1}, v{T+1}, v{T+2}
    v_lshlrev_b32 v{T+1}, 4, v{T+1}
    v_add_u32 v{T}, v{T}, v{T+1}
    s_lshl_b32 s36, s20, 7
    s_lshl_b32 s37, s22, 5
    s_add_u32 s36, s36, s37
    s_mul_i32 s36, s36, 1280
    v_add_u32 v{VA}, s36, v{T}
    v_xor_b32 v{T+1}, 64, v{T}
    s_add_u32 s37, s36, {10240-1024}
    v_add_u32 v{VA+1}, s37, v{T+1}
    s_add_u32 s37, s36, {2*10240-2048}
    v_add_u32 v{VA+2}, s37, v{T}
    s_add_u32 s37, s36, {3*10240-3072}
    v_add_u32 v{VA+3}, s37, v{T+1}
    """)
    a("s_lshl_b32 s36, s22, 4")
    a("s_mul_i32 s36, s36, s15")
    a("s_add_u32 s36, s36, s23")
    a("s_movk_i32 s37, 3277")
    for j in range(5):
        a(f"""
        v_add_u32 v{T}, {64*j}, v0
        v_mul_u32_u24 v{T+1}, s37, v{T}
        v_lshrrev_b32 v{T+1}, 16, v{T+1}
        v_mul_u32_u24 v{T+2}, 20, v{T+1}
        v_sub_u32 v{T+2}, v{T}, v{T+2}
        v_lshrrev_b32 v{T+3}, 2, v{T+1}
        v_and_b32 v{T+3}, 2, v{T+3}
        v_xor_b32 v{T+2}, v{T+2}, v{T+3}
        v_mul_lo_u32 v{T+1}, v{T+1}, s15
        v_lshlrev_b32 v{T+3}, 4, v{T+2}
        v_add_u32 v{T+1}, v{T+1}, v{T+3}
        v_mov_b32 v{T+3}, s14
        v_cmp_le_u32 vcc, 10, v{T+2}
        s_nop 1
        v_cndmask_b32 v{T+3}, 0, v{T+3}, vcc
        v_add_u32 v{T+1}, v{T+1}, v{T+3}
        v_add_u32 v{T+1}, s36, v{T+1}
        """)
        if 0 < j < 4:
            a(f"v_subrev_u32 v{VB+j}, {1024*j}, v{T+1}")
        else:
            a(f"v_mov_b32 v{VB+j}, v{T+1}")
    a("""
    s_mov_b32 s36, 0
    s_mov_b32 s37, 0
    s_lshl_b32 s41, s15, 6
    s_lshl_b32 s42, s22, 12
    s_mul_i32 s43, s22, 5120
    """)
    a(f"s_add_u32 s43, s43, {B_RING}")
    a("s_mov_b32 s40, 0")

    def issue():
        a(f"""
        s_lshl_b32 s38, s40, 14
        s_add_u32 s38, s38, s42
        s_mul_i32 s39, s40, 20480
        s_add_u32 s39, s39, s43
        s_mov_b32 m0, s38
        s_add_u32 s40, s40, 1
        """)
        for j in range(4):
            a(f"buffer_load_dwordx4 v{VA+j}, s[24:27], s36 offen offset:{1024*j} lds")
        a("s_mov_b32 m0, s39")
        a("s_and_b32 s40, s40, 3")
        for j in range(4):
            a(f"buffer_load_dwordx4 v{VB+j}, s[28:31], s37 offen offset:{1024*j} lds")
        a("s_add_u32 m0, s39, 4096")
        a("s_add_u32 s36, s36, 128")
        a(f"buffer_load_dwordx4 v{VB+4}, s[28:31], s37 offen lds")
        a("s_add_u32 s37, s37, s41")

    SUM, SQ, CS = 20, 24, 28
    RA, RB = 40, 56
    VSA, VC, ONES = 80, 81, 82
    isH = "L_k1_ld_h"
    a("s_cmp_eq_u32 s18, 3")
    a(f"s_cbranch_scc1 {isH}")
    stamp(a, 1)
    for _ in range(3): issue()
    stamp(a, 2)
    a("s_mov_b32 s44, 0")
    a.label("L_k1_ld_loop")
    a("s_waitcnt vmcnt(18)")
    a("s_barrier")
    issue()
    a("s_add_u32 s44, s44, 1\ns_cmp_lt_u32 s44, 7\ns_cbranch_scc1 L_k1_ld_loop")
    a("s_waitcnt vmcnt(18)\ns_barrier\ns_waitcnt vmcnt(9)\ns_barrier\ns_waitcnt vmcnt(0)\ns_barrier")
    if STAMP:
        stamp(a, 3)
        a("s_add_u32 s22, s22, 4")
        stamp_flush(a, 0, "s22", 4)
    a("s_endpgm")
    a.label(isH)
    for _ in range(3): issue()
    a(f"""
    v_lshlrev_b32 v{VSA}, 4, v0
    v_add_u32 v{VSA}, s42, v{VSA}
    v_lshrrev_b32 v{T}, 4, v0
    v_and_b32 v{T+1}, 1, v{T}
    v_lshrrev_b32 v{T}, 1, v{T}
    v_lshlrev_b32 v{T}, 2, v{T}
    v_lshlrev_b32 v{T+2}, 3, v{T+1}
    v_add_u32 v{T}, v{T}, v{T+2}
    v_bfe_u32 v{T+2}, v0, 2, 2
    v_add_u32 v{T}, v{T}, v{T+2}
    v_mul_u32_u24 v{T}, 320, v{T}
    v_and_b32 v{T+2}, 3, v0
    v_lshlrev_b32 v{T+2}, 3, v{T+2}
    v_add_u32 v{T}, v{T}, v{T+2}
    s_lshl_b32 s46, s22, 5
    s_add_u32 s46, s46, {B_RING}
    v_add_u32 v{T}, s46, v{T}
    v_lshlrev_b32 v{T+1}, 5, v{T+1}
    s_and_b32 s46, s22, 1
    s_cmp_eq_u32 s46, 0
    s_cselect_b32 s46, 1, -1
    v_mul_lo_u32 v{T+1}, v{T+1}, s46
    v_add_u32 v{VC}, v{T}, v{T+1}
    v_mov_b32 v{ONES}, 0x3f803f80
    """)
    for r in range(SUM, CS+3): a(f"v_mov_b32 v{r}, 0")
    a("s_mov_b32 s44, 0\ns_mov_b32 s45, 0")
    def stats():
        a(f"""
        s_lshl_b32 s46, s45, 14
        s_mul_i32 s47, s45, 20480
        v_add_u32 v{T}, s46, v{VSA}
        v_add_u32 v{T+1}, s47, v{VC}
        s_add_u32 s45, s45, 1
        s_and_b32 s45, s45, 3
        """)
        for j in range(4):
            a(f"ds_read_b128 v[{RA+4*j}:{RA+4*j+3}], v{T} offset:{1024*j}")
        def rb(n):
            for m in range(4):
                a(f"ds_read_b64_tr_b16 v[{RB+8*n+2*m}:{RB+8*n+2*m+1}], v{T+1} offset:{m*16*320 + n*128}")
        rb(0); rb(1)
        a("s_waitcnt lgkmcnt(8)")
        for d in range(4):
            for j in range(4):
                a(f"v_dot2_f32_bf16 v{SUM+j}, v{RA+4*j+d}, v{ONES}, v{SUM+j}")
                a(f"v_dot2_f32_bf16 v{SQ+j}, v{RA+4*j+d}, v{RA+4*j+d}, v{SQ+j}")
        rb(2)
        a("s_waitcnt lgkmcnt(4)")
        for d in range(8):
            for n in range(2):
                a(f"v_dot2_f32_bf16 v{CS+n}, v{RB+8*n+d}, v{ONES}, v{CS+n}")
        a("s_waitcnt lgkmcnt(0)")
        for d in range(8):
            a(f"v_dot2_f32_bf16 v{CS+2}, v{RB+16+d}, v{ONES}, v{CS+2}")
    a.label("L_k1_ldh_loop")
    a("s_waitcnt vmcnt(18)")
    a("s_barrier")
    issue()
    stats()
    a("s_add_u32 s44, s44, 1\ns_cmp_lt_u32 s44, 7\ns_cbranch_scc1 L_k1_ldh_loop")
    stamp(a, 1)
    a("s_mov_b32 s44, 18")
    a.label("L_k1_ldh_tail")
    a("s_cmp_eq_u32 s44, 18\ns_cbranch_scc0 L_k1_ldh_t1\ns_waitcnt vmcnt(18)\ns_branch L_k1_ldh_t3")
    a.label("L_k1_ldh_t1")
    a("s_cmp_eq_u32 s44, 9\ns_cbranch_scc0 L_k1_ldh_t2\ns_waitcnt vmcnt(9)\ns_branch L_k1_ldh_t3")
    a.label("L_k1_ldh_t2")
    a("s_waitcnt vmcnt(0)")
    a.label("L_k1_ldh_t3")
    a("s_barrier")
    stats()
    a("s_cmp_eq_u32 s44, 0\ns_cselect_b32 s48, 1, 0\ns_sub_u32 s44, s44, 9\ns_cmp_eq_u32 s48, 0\ns_cbranch_scc1 L_k1_ldh_tail")
    stamp(a, 3)
    a("s_nop 3")
    for step in ("quad_perm:[1,0,3,2]", "quad_perm:[2,3,0,1]", "row_half_mirror"):
        for r in range(SUM, SUM+8):
            a(f"v_add_f32_dpp v{r}, v{r}, v{r} {step} row_mask:0xf bank_mask:0xf")
    a(f"s_mov_b32 s46, {f32(1.0/640)}")
    a(f"s_mov_b32 s47, {f32(1e-5)}")
    a(f"""
    v_lshrrev_b32 v{T}, 3, v0
    v_lshlrev_b32 v{T}, 3, v{T}
    s_lshl_b32 s48, s22, 8
    s_add_u32 s48, s48, {MISC}
    v_add_u32 v{T}, s48, v{T}
    """)
    for j in range(4):
        m = RA + 2*j
        a(f"""
        v_mul_f32 v{m}, s46, v{SUM+j}
        v_mul_f32 v{m+1}, s46, v{SQ+j}
        v_fma_f32 v{m+1}, -v{m}, v{m}, v{m+1}
        v_add_f32 v{m+1}, s47, v{m+1}
        v_rsq_f32 v{m+1}, v{m+1}
        s_nop 0
        ds_write_b64 v{T}, v[{m}:{m+1}] offset:{ST_OFF + 64*j}
        """)
    lane_group_sum(a, [CS, CS+1, CS+2], RB)
    a(f"""
    v_and_b32 v{T}, 15, v0
    v_lshlrev_b32 v{T}, 2, v{T}
    s_lshl_b32 s48, s22, 6
    s_add_u32 s48, s48, {MISC}
    v_add_u32 v{T}, s48, v{T}
    """)
    for n in range(3):
        a(f"ds_write_b32 v{T}, v{CS+n} offset:{CS_OFF + 256*n}")
    a("s_waitcnt lgkmcnt(0)")
    if STAMP:
        a("s_add_u32 s22, s22, 4")
        stamp_flush(a, 0, "s22", 4)
    a("s_barrier\ns_endpgm")

ACC = 0
def acc(i, t): return 4*(i*5+t)
XA, XB = 80, 96
YA, YB = 116, 132
VA0, VA1, VBE, VBO = 152, 153, 154, 155
LANE = 255

def reads(a, SA, SB, ks):
    r = []
    va = VA0 if ks == 0 else VA1
    ra = [f"ds_read_b128 v[{SA+4*i}:{SA+4*i+3}], v{va} offset:{2048*i}" for i in range(4)]
    rb = []
    for tt in range(5):
        vb = VBE if tt % 2 == 0 else VBO
        for j in range(2):
            rb.append(f"ds_read_b64_tr_b16 v[{SB+4*tt+2*j}:{SB+4*tt+2*j+1}], v{vb} offset:{ks*32*320 + j*4*320 + tt*32}")
    r = [ra[0], rb[0], rb[1], ra[1], rb[2], rb[3], ra[2], rb[4], rb[5], ra[3], rb[6], rb[7], rb[8], rb[9]]
    return r

def mfmas(SA, SB, swapped):
    m = []
    for tt in range(5):
        for i in range(4):
            d = f"v[{acc(i,tt)}:{acc(i,tt)+3}]"
            xa = f"v[{SA+4*i}:{SA+4*i+3}]"; wb = f"v[{SB+4*tt}:{SB+4*tt+3}]"
            m.append(f"v_mfma_f32_16x16x32_bf16 {d}, {wb}, {xa}, {d}" if swapped else f"v_mfma_f32_16x16x32_bf16 {d}, {xa}, {wb}, {d}")
    return m

def interleave(a, ms, rs, per=1, start=0):
    k = 0
    for n, m in enumerate(ms):
        a(m)
        if n >= start:
            for _ in range(per):
                if k < len(rs): a(rs[k]); k += 1
    while k < len(rs): a(rs[k]); k += 1

def mainloop(a, tag, swapped):
    a("s_mov_b32 s40, 0")
    a("s_barrier")
    stamp(a, 1)
    for r in reads(a, XA, XB, 0): a(r)
    a("s_waitcnt lgkmcnt(0)")
    a.label(f"L_k1_main_{tag}")
    interleave(a, mfmas(XA, XB, swapped), reads(a, YA, YB, 1))
    a(f"""
    s_add_u32 s40, s40, 1
    s_and_b32 s41, s40, 3
    s_cmp_eq_u32 s41, 0
    s_mov_b32 s42, 16384
    s_cselect_b32 s42, {-3*16384 & 0xffffffff:#x}, s42
    s_mov_b32 s43, 20480
    s_cselect_b32 s43, {-3*20480 & 0xffffffff:#x}, s43
    s_cmp_eq_u32 s40, {NST}
    s_waitcnt lgkmcnt(0)
    v_add_u32 v{VA0}, s42, v{VA0}
    v_add_u32 v{VA1}, s42, v{VA1}
    v_add_u32 v{VBE}, s43, v{VBE}
    v_add_u32 v{VBO}, s43, v{VBO}
    s_cbranch_scc1 L_k1_last_{tag}
    s_barrier
    """)
    interleave(a, mfmas(YA, YB, swapped), reads(a, XA, XB, 0))
    a("s_waitcnt lgkmcnt(0)")
    a(f"s_branch L_k1_main_{tag}")
    a.label(f"L_k1_last_{tag}")
    for m in mfmas(YA, YB, swapped): a(m)
    stamp(a, 2)

def compute(a, END):
    a(f"v_mov_b32 v{LANE}, v0")
    T = 160
    a(f"""
    s_lshr_b32 s36, s22, 1
    s_and_b32 s37, s22, 1
    v_and_b32 v{T}, 15, v{LANE}
    v_lshrrev_b32 v{T+1}, 4, v{LANE}
    v_lshrrev_b32 v{T+2}, 1, v{T}
    v_xor_b32 v{T+2}, v{T+2}, v{T+1}
    v_lshlrev_b32 v{T+2}, 4, v{T+2}
    v_lshlrev_b32 v{T+3}, 7, v{T}
    v_add_u32 v{T+2}, v{T+2}, v{T+3}
    s_lshl_b32 s38, s36, 13
    v_add_u32 v{VA0}, s38, v{T+2}
    v_xor_b32 v{VA1}, 64, v{VA0}
    v_lshlrev_b32 v{T+2}, 3, v{T+1}
    v_lshrrev_b32 v{T+3}, 2, v{T}
    v_add_u32 v{T+2}, v{T+2}, v{T+3}
    v_mul_u32_u24 v{T+2}, 320, v{T+2}
    v_and_b32 v{T+3}, 3, v{T}
    v_lshlrev_b32 v{T+3}, 3, v{T+3}
    v_add_u32 v{T+2}, v{T+2}, v{T+3}
    s_mul_i32 s38, s37, 160
    s_add_u32 s38, s38, {B_RING}
    v_add_u32 v{T+2}, s38, v{T+2}
    v_and_b32 v{T+3}, 1, v{T+1}
    v_lshlrev_b32 v{T+3}, 5, v{T+3}
    s_cmp_eq_u32 s37, 0
    s_cselect_b32 s39, 1, -1
    v_mul_lo_u32 v{T+3}, v{T+3}, s39
    v_add_u32 v{VBE}, v{T+2}, v{T+3}
    v_sub_u32 v{VBO}, v{T+2}, v{T+3}
    """)
    for r in range(80): a(f"v_mov_b32 v{r}, 0")
    a("s_cmp_lt_u32 s18, 2")
    a("s_cbranch_scc1 L_k1_kv")
    mainloop(a, "sw", True)
    VO, VO2 = 156, 157
    a(f"""
    v_lshrrev_b32 v{T+1}, 4, v{LANE}
    v_and_b32 v{T}, 15, v{LANE}
    v_lshlrev_b32 v{T}, 4, v{T}
    v_and_b32 v{T+2}, 1, v{T+1}
    v_lshrrev_b32 v{T+3}, 1, v{T+1}
    v_lshlrev_b32 v{T+4}, 1, v{T+2}
    v_add_u32 v{T+4}, v{T+4}, v{T+3}
    v_lshlrev_b32 v{T+4}, 15, v{T+4}
    v_add_u32 v{VO}, v{T+4}, v{T}
    v_add_u32 v{T+3}, 8, v{T+3}
    v_lshlrev_b32 v{T+3}, 15, v{T+3}
    v_lshlrev_b32 v{T+2}, 8, v{T+2}
    v_add_u32 v{T+3}, v{T+3}, v{T+2}
    v_add_u32 v{VO2}, v{T+3}, v{T}
    s_mul_i32 s38, s21, 20
    s_mul_i32 s39, s37, 10
    s_add_u32 s38, s38, s39
    s_lshl_b32 s38, s38, 15
    s_lshl_b32 s39, s20, 7
    s_lshl_b32 s42, s36, 6
    s_add_u32 s39, s39, s42
    s_lshl_b32 s39, s39, 4
    s_add_u32 s38, s38, s39
    s_cmp_eq_u32 s18, 3
    s_cselect_b32 s39, {WS_H}, {WS_PQ}
    s_add_u32 s38, s38, s39
    v_add_u32 v{VO}, s38, v{VO}
    v_add_u32 v{VO2}, s38, v{VO2}
    s_mov_b32 s43, {4*CSTR}
    s_cmp_eq_u32 s18, 3
    s_cbranch_scc1 L_k1_epi_h
    """)
    PK = 168
    def store_all(act):
        n = 0
        for i in range(4):
            for pp in range(2):
                P = PK + 4*(n & 1); n += 1
                act(i, 2*pp, P); act(i, 2*pp+1, P+2)
                a("s_nop 1")
                a(f"v_permlane16_swap_b32 v{P}, v{P+2}")
                a(f"v_permlane16_swap_b32 v{P+1}, v{P+3}")
                so = "0" if pp == 0 else "s43"
                a(f"buffer_store_dwordx4 v[{P}:{P+3}], v{VO}, s[32:35], {so} offen offset:{256*i}")
        for i in (0, 2):
            P = PK + 4*(n & 1); n += 1
            act(i, 4, P); act(i+1, 4, P+2)
            a("s_nop 1")
            a(f"v_permlane16_swap_b32 v{P}, v{P+2}")
            a(f"v_permlane16_swap_b32 v{P+1}, v{P+3}")
            a(f"buffer_store_dwordx4 v[{P}:{P+3}], v{VO2}, s[32:35], 0 offen offset:{256*i}")
    a(f"s_mov_b32 s44, {f32(LOG2E)}")
    a(f"s_mov_b32 s45, {f32(1e-6)}")
    a("s_nop 4")
    def phi(r, n, tmp):
        for k in range(n): a(f"v_min_f32 v{tmp+k}, 0, v{r+k}")
        for k in range(n): a(f"v_mul_f32 v{tmp+k}, s44, v{tmp+k}")
        for k in range(n): a(f"v_exp_f32 v{tmp+k}, v{tmp+k}")
        for k in range(n): a(f"v_max_f32 v{r+k}, 0, v{r+k}")
        for k in range(n): a(f"v_add_f32 v{tmp+k}, s45, v{tmp+k}")
        for k in range(n): a(f"v_add_f32 v{r+k}, v{r+k}, v{tmp+k}")
    def act_q(i, tt, P):
        r = acc(i, tt)
        phi(r, 4, 176)
        a(f"v_cvt_pk_bf16_f32 v{P}, v{r}, v{r+1}")
        a(f"v_cvt_pk_bf16_f32 v{P+1}, v{r+2}, v{r+3}")
    store_all(act_q)
    stamp(a, 3); stamp_flush(a, 0, "s22", 4)
    a("s_endpgm")
    a.label("L_k1_epi_h")
    STA, CSR, KC = 80, 96, 120
    a("s_barrier")
    stamp(a, 5)
    a(f"""
    v_and_b32 v{T}, 15, v{LANE}
    s_lshl_b32 s42, s36, 6
    v_add_u32 v{T}, s42, v{T}
    v_lshlrev_b32 v{T}, 3, v{T}
    v_add_u32 v{T}, {MISC}, v{T}
    v_lshrrev_b32 v{T+1}, 4, v{LANE}
    v_lshlrev_b32 v{T+1}, 4, v{T+1}
    s_mul_i32 s42, s37, 320
    s_add_u32 s42, s42, {MISC}
    v_add_u32 v{T+1}, s42, v{T+1}
    """)
    for i in range(4): a(f"ds_read_b64 v[{STA+2*i}:{STA+2*i+1}], v{T} offset:{ST_OFF + 128*i}")
    for tt in range(5): a(f"ds_read_b128 v[{CSR+4*tt}:{CSR+4*tt+3}], v{T+1} offset:{CS_OFF + 64*tt}")
    a(f"v_mov_b32 v{KC}, {f32(GC0)}\nv_mov_b32 v{KC+1}, {f32(GC1)}")
    a("s_waitcnt lgkmcnt(0)")
    def act_h(i, tt, P):
        r = acc(i, tt); m = STA + 2*i; c = CSR + 4*tt; t = 176
        for h in (0, 2):
            a(f"v_pk_fma_f32 v[{r+h}:{r+h+1}], v[{c+h}:{c+h+1}], v[{m}:{m+1}], v[{r+h}:{r+h+1}] op_sel_hi:[1,0,1] neg_lo:[0,1,0] neg_hi:[0,1,0]")
        for h in (0, 2):
            a(f"v_pk_mul_f32 v[{r+h}:{r+h+1}], v[{r+h}:{r+h+1}], v[{m}:{m+1}] op_sel:[0,1] op_sel_hi:[1,1]")
        for h in (0, 2):
            a(f"v_pk_mul_f32 v[{t+h}:{t+h+1}], v[{r+h}:{r+h+1}], v[{r+h}:{r+h+1}]")
        for h in (0, 2):
            a(f"v_pk_fma_f32 v[{t+h}:{t+h+1}], v[{t+h}:{t+h+1}], v[{KC}:{KC+1}], v[{KC}:{KC+1}] op_sel:[0,1,0] op_sel_hi:[1,1,0]")
        for h in (0, 2):
            a(f"v_pk_mul_f32 v[{t+h}:{t+h+1}], v[{t+h}:{t+h+1}], v[{r+h}:{r+h+1}]")
        for k in range(4): a(f"v_exp_f32 v{t+k}, v{t+k}")
        for h in (0, 2):
            a(f"v_pk_add_f32 v[{t+h}:{t+h+1}], v[{t+h}:{t+h+1}], 1.0 op_sel_hi:[1,0]")
        for k in range(4): a(f"v_rcp_f32 v{t+k}, v{t+k}")
        a("s_nop 0")
        for h in (0, 2):
            a(f"v_pk_mul_f32 v[{r+h}:{r+h+1}], v[{r+h}:{r+h+1}], v[{t+h}:{t+h+1}]")
        a(f"v_cvt_pk_bf16_f32 v{P}, v{r}, v{r+1}")
        a(f"v_cvt_pk_bf16_f32 v{P+1}, v{r+2}, v{r+3}")
    store_all(act_h)
    stamp(a, 3); stamp_flush(a, 0, "s22", 4)
    a("s_endpgm")

    a.label("L_k1_kv")
    mainloop(a, "nm", False)
    kv_epilogue(a)

def kv_epilogue(a):
    T = 160
    FR = 80
    OPS = 0
    ONES_OFF = 40960
    a(f"s_mov_b32 s44, {f32(LOG2E)}")
    a(f"s_mov_b32 s45, {f32(1e-6)}")
    a("s_nop 4")
    a("s_cmp_eq_u32 s37, 1")
    a("s_cbranch_scc1 L_k1_kv_nophi")
    for i in range(4):
        for tt in range(5):
            r = acc(i, tt); t = 176
            for k in range(4): a(f"v_min_f32 v{t+k}, 0, v{r+k}")
            for k in range(4): a(f"v_mul_f32 v{t+k}, s44, v{t+k}")
            for k in range(4): a(f"v_exp_f32 v{t+k}, v{t+k}")
            for k in range(4): a(f"v_max_f32 v{r+k}, 0, v{r+k}")
            for k in range(4): a(f"v_add_f32 v{t+k}, s45, v{t+k}")
            for k in range(4): a(f"v_add_f32 v{r+k}, v{r+k}, v{t+k}")
    a.label("L_k1_kv_nophi")
    for tt in range(5):
        for kk in range(2):
            f = FR + 4*(2*tt+kk)
            for half in range(2):
                r = acc(2*kk+half, tt)
                a(f"v_cvt_pk_bf16_f32 v{f+2*half}, v{r}, v{r+1}")
                a(f"v_cvt_pk_bf16_f32 v{f+2*half+1}, v{r+2}, v{r+3}")
    a("s_barrier")
    a(f"""
    v_lshlrev_b32 v{T}, 4, v{LANE}
    s_mul_i32 s38, s22, 10240
    v_add_u32 v{T+1}, s38, v{T}
    v_mov_b32 v{T+4}, 0x3f803f80
    v_mov_b32 v{T+5}, 0x3f803f80
    v_mov_b32 v{T+6}, 0x3f803f80
    v_mov_b32 v{T+7}, 0x3f803f80
    """)
    for n in range(10):
        a(f"ds_write_b128 v{T+1}, v[{FR+4*n}:{FR+4*n+3}] offset:{1024*n}")
    a(f"ds_write_b128 v{T}, v[{T+4}:{T+7}] offset:{ONES_OFF}")
    a("s_waitcnt lgkmcnt(0)\ns_barrier")
    jobs = [[(0,0),(0,1),(0,7),(4,3),(4,4)],
            [(1,0),(1,1),(1,2),(1,7),(4,7)],
            [(2,1),(2,2),(2,3),(2,7),None],
            [(3,2),(3,3),(3,4),(3,7),None]]
    def pack(js):
        x = 0
        for n, j in enumerate(js):
            aa, bb = j if j else (7, 7)
            x |= (aa | (bb << 3)) << (6*n)
        return x
    a(f"""
    s_cmp_eq_u32 s22, 0
    s_mov_b32 s46, {pack(jobs[1]):#x}
    s_cselect_b32 s46, {pack(jobs[0]):#x}, s46
    s_cmp_eq_u32 s22, 2
    s_cselect_b32 s46, {pack(jobs[2]):#x}, s46
    s_cmp_eq_u32 s22, 3
    s_cselect_b32 s46, {pack(jobs[3]):#x}, s46
    s_mov_b32 s47, 5
    """)
    a(f"""
    s_lshl_b32 s48, s20, 5
    s_lshl_b32 s49, s3, 2
    s_add_u32 s48, s48, s49
    s_mul_i32 s48, s48, 1664
    s_add_u32 s48, s48, {WS_KVS}
    s_mul_i32 s49, s20, 2560
    s_mul_i32 s50, s3, 320
    s_add_u32 s49, s49, s50
    s_add_u32 s49, s49, {WS_ZS}
    s_movk_i32 s56, 3277
    """)
    FA, FB, D = 120, 136, 152
    a.label("L_k1_kv_job")
    a(f"""
    s_and_b32 s50, s46, 7
    s_bfe_u32 s51, s46, 0x30003
    s_lshr_b32 s46, s46, 6
    s_cmp_eq_u32 s50, 7
    s_cbranch_scc1 L_k1_kv_next
    s_lshl_b32 s52, s50, 11
    s_lshl_b32 s53, s51, 11
    s_add_u32 s53, s53, 10240
    s_cmp_eq_u32 s51, 7
    s_cselect_b32 s53, {ONES_OFF}, s53
    s_cselect_b32 s54, 0, 1024
    s_cselect_b32 s55, 0, 20480
    v_add_u32 v{T+1}, s52, v{T}
    v_add_u32 v{T+2}, s53, v{T}
    v_add_u32 v{T+3}, s54, v{T+2}
    v_add_u32 v{T+4}, s55, v{T+2}
    v_add_u32 v{T+5}, s55, v{T+3}
    """)
    a(f"ds_read_b128 v[{FA}:{FA+3}], v{T+1}")
    a(f"ds_read_b128 v[{FB}:{FB+3}], v{T+2}")
    a(f"ds_read_b128 v[{FA+4}:{FA+7}], v{T+1} offset:1024")
    a(f"ds_read_b128 v[{FB+4}:{FB+7}], v{T+3}")
    a(f"ds_read_b128 v[{FA+8}:{FA+11}], v{T+1} offset:20480")
    a(f"ds_read_b128 v[{FB+8}:{FB+11}], v{T+4}")
    a(f"ds_read_b128 v[{FA+12}:{FA+15}], v{T+1} offset:21504")
    a(f"ds_read_b128 v[{FB+12}:{FB+15}], v{T+5}")
    A0, E, HE, AD = T+8, T+9, T+10, T+11
    a(f"""
    v_lshrrev_b32 v{A0}, 4, v{LANE}
    v_lshlrev_b32 v{A0}, 2, v{A0}
    s_lshl_b32 s52, s50, 4
    v_add_u32 v{A0}, s52, v{A0}
    v_and_b32 v{E}, 15, v{LANE}
    s_lshl_b32 s53, s51, 4
    v_add_u32 v{E}, s53, v{E}
    v_mul_u32_u24 v{HE}, s56, v{E}
    v_lshrrev_b32 v{HE}, 16, v{HE}
    s_cmp_eq_u32 s51, 7
    s_cbranch_scc1 L_k1_kv_zaddr
    """)
    for r in range(4):
        a(f"""
        v_add_u32 v{T+16}, {r}, v{A0}
        v_mul_u32_u24 v{T+17}, s56, v{T+16}
        v_lshrrev_b32 v{T+17}, 16, v{T+17}
        v_mul_u32_u24 v{T+16}, 80, v{T+16}
        v_lshl_add_u32 v{T+16}, v{E}, 2, v{T+16}
        v_lshlrev_b32 v{T+18}, 4, v{T+17}
        v_sub_u32 v{T+16}, v{T+16}, v{T+18}
        v_add_u32 v{T+16}, s48, v{T+16}
        v_cmp_eq_u32 vcc, v{T+17}, v{HE}
        v_mov_b32 v{T+18}, 0x7ffffff0
        s_nop 0
        v_cndmask_b32 v{AD+r}, v{T+18}, v{T+16}, vcc
        """)
    a("s_branch L_k1_kv_mm")
    a.label("L_k1_kv_zaddr")
    a(f"""
    v_and_b32 v{T+16}, 15, v{LANE}
    v_cmp_eq_u32 vcc, 0, v{T+16}
    v_lshlrev_b32 v{T+17}, 2, v{A0}
    v_add_u32 v{T+17}, s49, v{T+17}
    v_mov_b32 v{T+18}, 0x7ffffff0
    v_cndmask_b32 v{T+17}, v{T+18}, v{T+17}, vcc
    v_add_u32 v{AD}, 0, v{T+17}
    v_add_u32 v{AD+1}, 4, v{T+17}
    v_add_u32 v{AD+2}, 8, v{T+17}
    v_add_u32 v{AD+3}, 12, v{T+17}
    """)
    a.label("L_k1_kv_mm")
    a("s_waitcnt lgkmcnt(6)")
    a(f"v_mfma_f32_16x16x32_bf16 v[{D}:{D+3}], v[{FA}:{FA+3}], v[{FB}:{FB+3}], 0")
    for n in range(1, 4):
        a(f"s_waitcnt lgkmcnt({6-2*n})")
        a(f"v_mfma_f32_16x16x32_bf16 v[{D}:{D+3}], v[{FA+4*n}:{FA+4*n+3}], v[{FB+4*n}:{FB+4*n+3}], v[{D}:{D+3}]")
    a("s_nop 7")
    for r in range(4):
        a(f"buffer_store_dword v{D+r}, v{AD+r}, s[32:35], 0 offen")
    a.label("L_k1_kv_next")
    a("s_sub_u32 s47, s47, 1\ns_cmp_lg_u32 s47, 0\ns_cbranch_scc1 L_k1_kv_job")
    stamp(a, 3); stamp_flush(a, 0, "s22", 4)
    a("s_endpgm")
```

```python
from common import *

SLOT = 20480
NSLOT = 6
RES = NSLOT * SLOT
K24_LDS = 163840
XA, XB = 24, 36
YA, YB = 44, 56
VA, VB0, VB1 = 64, 65, 66
LANE = 67
def acc(i, tt): return 4*(i*2+tt)

def reads(SA, SB, ks):
    ra = [f"ds_read_b128 v[{SA+4*i}:{SA+4*i+3}], v{VA} offset:{ks*6144 + 256*i}" for i in range(3)]
    rb = [f"ds_read_b64_tr_b16 v[{SB+4*tt+2*j}:{SB+4*tt+2*j+1}], v{VB0+tt} offset:{ks*4096 + j*512}" for tt in range(2) for j in range(2)]
    return [rb[0], rb[1], ra[0], rb[2], rb[3], ra[1], ra[2]]
def mfmas(SA, SB):
    return [f"v_mfma_f32_16x16x32_bf16 v[{acc(i,tt)}:{acc(i,tt)+3}], v[{SB+4*tt}:{SB+4*tt+3}], v[{SA+4*i}:{SA+4*i+3}], v[{acc(i,tt)}:{acc(i,tt)+3}]"
            for i in range(3) for tt in range(2)]
def interleave(a, ms, rs):
    k = 0
    for m in ms:
        a(m)
        for _ in range(2):
            if k < len(rs): a(rs[k]); k += 1

def gemm_wg(a, kn, NS, shift):
    a("s_cmp_ge_u32 s22, 4")
    a(f"s_cbranch_scc1 L_{kn}_loader")
    T = 70
    a(f"""
    v_mov_b32 v{LANE}, v0
    s_lshr_b32 s36, s22, 1
    s_and_b32 s37, s22, 1
    v_and_b32 v{T}, 15, v0
    v_lshrrev_b32 v{T+1}, 4, v0
    v_mul_u32_u24 v{T+2}, 1536, v{T+1}
    v_lshl_add_u32 v{T+2}, v{T}, 4, v{T+2}
    s_mul_i32 s38, s36, 768
    v_add_u32 v{VA}, s38, v{T+2}
    v_lshrrev_b32 v{T+2}, 2, v{T}
    v_lshlrev_b32 v{T+3}, 3, v{T+1}
    v_add_u32 v{T+3}, v{T+3}, v{T+2}
    v_lshlrev_b32 v{T+3}, 7, v{T+3}
    v_and_b32 v{T+4}, 3, v{T}
    v_lshl_add_u32 v{T+3}, v{T+4}, 3, v{T+3}
    v_add_u32 v{T+3}, 12288, v{T+3}
    v_lshrrev_b32 v{T+2}, 1, v{T+2}
    v_and_b32 v{T+4}, 1, v{T+1}
    v_lshlrev_b32 v{T+4}, 1, v{T+4}
    s_lshl_b32 s38, s37, 1
    v_xor_b32 v{T+4}, s38, v{T+4}
    v_add_u32 v{T+5}, v{T+4}, v{T+2}
    v_lshl_add_u32 v{VB0}, v{T+5}, 5, v{T+3}
    v_xor_b32 v{T+2}, 1, v{T+2}
    v_add_u32 v{T+5}, v{T+4}, v{T+2}
    v_lshl_add_u32 v{VB1}, v{T+5}, 5, v{T+3}
    """)
    for r in range(24): a(f"v_mov_b32 v{r}, 0")
    a("s_mov_b32 s40, 0\ns_mov_b32 s41, 0")
    a("s_barrier")
    stamp(a, 1)
    for r in reads(XA, XB, 0): a(r)
    a("s_waitcnt lgkmcnt(0)")
    a.label(f"L_{kn}_main")
    interleave(a, mfmas(XA, XB), reads(YA, YB, 1))
    a(f"""
    s_add_u32 s40, s40, 1
    s_add_u32 s41, s41, 1
    s_mov_b32 s42, {SLOT}
    s_cmp_eq_u32 s41, {NSLOT}
    s_cselect_b32 s42, {(-(NSLOT-1)*SLOT) & 0xffffffff:#x}, s42
    s_cselect_b32 s41, 0, s41
    s_cmp_eq_u32 s40, {NS}
    s_waitcnt lgkmcnt(0)
    v_add_u32 v{VA}, s42, v{VA}
    v_add_u32 v{VB0}, s42, v{VB0}
    v_add_u32 v{VB1}, s42, v{VB1}
    s_cbranch_scc1 L_{kn}_last
    s_barrier
    """)
    interleave(a, mfmas(YA, YB), reads(XA, XB, 0))
    a("s_waitcnt lgkmcnt(0)")
    a(f"s_branch L_{kn}_main")
    a.label(f"L_{kn}_last")
    for m in mfmas(YA, YB): a(m)
    stamp(a, 2)
    a("s_barrier")

def loader(a, kn, NS, shift, nres, res_issue):
    a.label(f"L_{kn}_loader")
    T = 20
    ROW, CB, VOF, VB = 2, 5, 8, 11
    a("s_sub_u32 s22, s22, 4")
    a(f"""
    s_mul_i32 s36, s20, 96
    s_lshl_b32 s37, s22, 16
    v_add_u32 v{ROW}, s36, v0
    v_mov_b32 v{CB}, s37
    v_cmp_gt_u32 vcc, 32, v0
    v_add_u32 v{T}, 64, v0
    v_subrev_u32 v{T+1}, 32, v0
    v_cndmask_b32 v{T}, v{T+1}, v{T}, vcc
    v_add_u32 v{ROW+1}, s36, v{T}
    v_mov_b32 v{T}, s37
    v_add_u32 v{T+1}, {CSTR}, v{T}
    v_cndmask_b32 v{CB+1}, v{T+1}, v{T}, vcc
    v_add_u32 v{T}, 32, v0
    v_add_u32 v{ROW+2}, s36, v{T}
    v_mov_b32 v{CB+2}, v{T+1}
    """)
    a(f"""
    v_lshrrev_b32 v{T}, 3, v0
    s_lshl_b32 s37, s22, 4
    v_add_u32 v{T}, s37, v{T}
    v_mul_u32_u24 v{T}, 1280, v{T}
    s_lshl_b32 s37, s21, 7
    v_add_u32 v{T}, s37, v{T}
    v_bfe_u32 v{T+1}, v0, 4, 1
    v_lshlrev_b32 v{T+1}, 1, v{T+1}
    v_and_b32 v{T+2}, 7, v0
    v_xor_b32 v{T+1}, v{T+1}, v{T+2}
    v_lshl_add_u32 v{VB}, v{T+1}, 4, v{T}
    v_xor_b32 v{T+1}, 4, v{T+1}
    v_lshl_add_u32 v{VB+1}, v{T+1}, 4, v{T}
    v_add_u32 v{VB+1}, {8*1280}, v{VB+1}
    """)
    a(f"""
    s_mov_b32 s36, 0
    s_mov_b32 s37, 0
    s_mov_b32 s40, 0
    s_mov_b32 s41, 0
    s_mul_i32 s42, s22, 3072
    s_lshl_b32 s43, s22, 11
    s_add_u32 s43, s43, 12288
    """)
    if not shift:
        for j in range(3):
            a(f"v_lshl_add_u32 v{VOF+j}, v{ROW+j}, 4, v{CB+j}")
    def issue():
        a(f"s_mul_i32 s38, s40, {SLOT}")
        if shift:
            a(f"""
            s_lshl_b32 s44, s41, 3
            s_lshl_b32 s45, s22, 1
            s_add_u32 s44, s44, s45
            s_cmp_lt_u32 s44, 20
            s_cselect_b32 s45, 1, -1
            s_cmp_lt_u32 s44, 40
            s_cselect_b32 s45, s45, 2
            s_cmp_lt_u32 s44, 60
            s_cselect_b32 s45, s45, -2
            """)
            for j in range(3):
                a(f"""
                v_subrev_u32 v{T}, s45, v{ROW+j}
                v_cmp_gt_u32 vcc, 0x800, v{T}
                v_lshl_add_u32 v{T}, v{T}, 4, v{CB+j}
                v_mov_b32 v{T+1}, 0x80000000
                v_cndmask_b32 v{VOF+j}, v{T+1}, v{T}, vcc
                """)
        a("s_add_u32 s39, s38, s42")
        a("s_mov_b32 m0, s39")
        a("s_add_u32 s38, s38, s43")
        for j in range(3):
            a(f"buffer_load_dwordx4 v{VOF+j}, s[24:27], s36 offen lds")
            if j < 2: a("s_add_u32 m0, m0, 1024\ns_nop 0")
        a("s_mov_b32 m0, s38")
        a(f"s_add_u32 s36, s36, {8*CSTR}")
        a(f"buffer_load_dwordx4 v{VB}, s[28:31], s37 offen lds")
        a("s_add_u32 m0, m0, 1024")
        a("s_add_u32 s41, s41, 1")
        a(f"buffer_load_dwordx4 v{VB+1}, s[28:31], s37 offen lds")
        a(f"s_add_u32 s37, s37, {64*1280}")
        a(f"s_add_u32 s40, s40, 1\ns_cmp_eq_u32 s40, {NSLOT}\ns_cselect_b32 s40, 0, s40")
    D = NSLOT - 1
    a("s_mov_b32 s46, 0")
    a.label(f"L_{kn}_ld_pro")
    issue()
    a(f"s_add_u32 s46, s46, 1\ns_cmp_lt_u32 s46, {D}\ns_cbranch_scc1 L_{kn}_ld_pro")
    stamp(a, 1)
    a("s_mov_b32 s46, 0")
    a.label(f"L_{kn}_ld_loop")
    a(f"s_waitcnt vmcnt({5*(D-1)})")
    a("s_barrier")
    issue()
    a(f"s_add_u32 s46, s46, 1\ns_cmp_lt_u32 s46, {NS-D}\ns_cbranch_scc1 L_{kn}_ld_loop")
    res_issue()
    for i in range(NS-D, NS):
        a(f"s_waitcnt vmcnt({5*(NS-1-i)+nres})\ns_barrier")
    a("s_waitcnt vmcnt(0)\ns_barrier")
    if STAMP:
        stamp(a, 2)
        a("s_add_u32 s22, s22, 4")
        stamp_flush(a, 1 if kn == "k2" else 3, "s22", 4)
    a("s_endpgm")

def cm_store_addr(a, VO, base_s, T):
    a(f"""
    v_lshrrev_b32 v{T+1}, 4, v{LANE}
    v_and_b32 v{T}, 15, v{LANE}
    v_and_b32 v{T+2}, 1, v{T+1}
    v_lshrrev_b32 v{T+3}, 1, v{T+1}
    v_lshl_add_u32 v{T+3}, v{T+2}, 1, v{T+3}
    s_lshl_b32 s38, s21, 3
    s_lshl_b32 s39, s37, 2
    s_add_u32 s38, s38, s39
    v_add_u32 v{T+3}, s38, v{T+3}
    v_lshlrev_b32 v{T+3}, 15, v{T+3}
    v_add_u32 v{T+3}, {base_s}, v{T+3}
    s_mul_i32 s38, s20, 96
    s_mul_i32 s39, s36, 48
    s_add_u32 s38, s38, s39
    v_add_u32 v{T}, s38, v{T}
    """)
    for i in range(3):
        a(f"""
        v_add_u32 v{T+4}, {16*i}, v{T}
        v_cmp_gt_u32 vcc, 0x800, v{T+4}
        v_lshl_add_u32 v{T+4}, v{T+4}, 4, v{T+3}
        v_mov_b32 v{T+5}, 0x80000000
        v_cndmask_b32 v{VO+i}, v{T+5}, v{T+4}, vcc
        """)

def gen_k2(a):
    name = "k2_kernel"; kn = "k2"
    kernel_head(a, name)
    a("s_cmp_ge_u32 s2, 256\ns_cbranch_scc1 L_k2_end")
    stamp(a, 0)
    a(f"s_load_dwordx2 s[4:5], s[0:1], {KA_W2}")
    a(f"s_load_dwordx2 s[6:7], s[0:1], {KA_AX}")
    a(f"s_load_dwordx2 s[8:9], s[0:1], {KA_WO}")
    a(f"s_load_dwordx2 s[12:13], s[0:1], {KA_WS}")
    a("""
    v_lshrrev_b32 v1, 6, v0
    v_and_b32 v0, 63, v0
    s_mul_i32 s20, s2, 6554
    s_lshr_b32 s20, s20, 16
    s_mul_i32 s21, s20, 10
    s_sub_u32 s21, s2, s21
    v_readfirstlane_b32 s22, v1
    s_waitcnt lgkmcnt(0)
    """)
    srd(a, 32, 12, WS_END)
    a("s_cmp_ge_u32 s2, 220\ns_cbranch_scc1 L_k2_side")
    srd(a, 24, 12, CM, WS_H)
    srd(a, 28, 4, 819200)
    srd(a, 48, 6, CM)
    gemm_wg(a, kn, 10, True)
    T = 70; VO = 96; RX = 84; PK = 100
    a(f"""
    v_and_b32 v{T}, 15, v{LANE}
    v_lshrrev_b32 v{T+1}, 4, v{LANE}
    s_mul_i32 s38, s36, 48
    v_add_u32 v{T+2}, s38, v{T}
    v_lshrrev_b32 v{T+3}, 1, v{T+2}
    v_and_b32 v{T+3}, 7, v{T+3}
    v_lshrrev_b32 v{T+4}, 1, v{T+1}
    s_lshl_b32 s38, s37, 2
    v_add_u32 v{T+4}, s38, v{T+4}
    v_xor_b32 v{T+4}, v{T+4}, v{T+3}
    v_lshlrev_b32 v{T+4}, 4, v{T+4}
    v_and_b32 v{T+5}, 1, v{T+1}
    v_lshl_add_u32 v{T+4}, v{T+5}, 3, v{T+4}
    v_lshl_add_u32 v{T+4}, v{T+2}, 7, v{T+4}
    v_add_u32 v{T+4}, {RES}, v{T+4}
    v_xor_b32 v{T+5}, 32, v{T+4}
    """)
    for i in range(3):
        for tt in range(2):
            a(f"ds_read_b64 v[{RX+2*(2*i+tt)}:{RX+2*(2*i+tt)+1}], v{T+4+tt} offset:{2048*i}")
    a(f"s_mov_b32 s44, {WS_X1}")
    cm_store_addr(a, VO, "s44", T+6)
    a("s_waitcnt lgkmcnt(0)")
    for i in range(3):
        P = PK + 4*(i & 1)
        for tt in range(2):
            r = acc(i, tt); x = RX + 2*(2*i+tt); t = 108
            a(f"""
            v_lshlrev_b32 v{t}, 16, v{x}
            v_and_b32 v{t+1}, 0xffff0000, v{x}
            v_lshlrev_b32 v{t+2}, 16, v{x+1}
            v_and_b32 v{t+3}, 0xffff0000, v{x+1}
            v_add_f32 v{r}, v{r}, v{t}
            v_add_f32 v{r+1}, v{r+1}, v{t+1}
            v_add_f32 v{r+2}, v{r+2}, v{t+2}
            v_add_f32 v{r+3}, v{r+3}, v{t+3}
            v_cvt_pk_bf16_f32 v{P+2*tt}, v{r}, v{r+1}
            v_cvt_pk_bf16_f32 v{P+2*tt+1}, v{r+2}, v{r+3}
            """)
        a("s_nop 1")
        a(f"v_permlane16_swap_b32 v{P}, v{P+2}")
        a(f"v_permlane16_swap_b32 v{P+1}, v{P+3}")
        a(f"buffer_store_dwordx4 v[{P}:{P+3}], v{VO+i}, s[32:35], 0 offen")
    stamp(a, 3); stamp_flush(a, 1, "s22", 4)
    a("s_endpgm")
    def res_issue():
        T = 20
        a(f"""
        v_lshrrev_b32 v{T}, 3, v0
        s_mul_i32 s44, s20, 96
        s_mul_i32 s45, s22, 24
        s_add_u32 s44, s44, s45
        v_add_u32 v{T}, s44, v{T}
        v_mul_u32_u24 v{T}, 1280, v{T}
        s_lshl_b32 s44, s21, 7
        v_add_u32 v{T}, s44, v{T}
        s_mul_i32 s44, s22, 3072
        s_add_u32 s44, s44, {RES}
        """)
        for j in range(3):
            a(f"""
            s_mul_i32 s45, s22, 12
            s_add_u32 s45, s45, {4*j}
            v_lshrrev_b32 v{T+1}, 4, v0
            v_add_u32 v{T+1}, s45, v{T+1}
            v_and_b32 v{T+1}, 7, v{T+1}
            v_and_b32 v{T+2}, 7, v0
            v_xor_b32 v{T+1}, v{T+1}, v{T+2}
            v_lshl_add_u32 v{T+3+j}, v{T+1}, 4, v{T}
            v_add_u32 v{T+3+j}, {j*8*1280}, v{T+3+j}
            s_add_u32 m0, s44, {1024*j}
            s_nop 0
            buffer_load_dwordx4 v{T+3+j}, s[48:51], 0 offen lds
            """)
    loader(a, kn, 10, True, 3, res_issue)
    k2_side(a)
    a.label("L_k2_end")
    a("s_endpgm")
    return name

def k2_side(a):
    a.label("L_k2_side")
    a("s_sub_u32 s20, s2, 220\ns_cmp_ge_u32 s20, 32\ns_cbranch_scc1 L_k2_end")
    srd(a, 28, 8, 819200)
    ZP = 0
    KP = 4096
    KVB = 20480
    WOT = 24576
    WST = 69632
    PQ = 4
    T = 60
    a(f"""
    s_and_b32 s21, s20, 7
    s_lshr_b32 s23, s20, 3
    s_lshl_b32 s36, s23, 9
    s_lshl_b32 s37, s22, 6
    s_add_u32 s36, s36, s37
    v_add_u32 v1, s36, v0
    v_lshlrev_b32 v1, 4, v1
    s_mul_i32 s37, s21, {10*CSTR}
    v_add_u32 v1, s37, v1
    s_mov_b32 s38, {WS_PQ}
    """)
    for c in range(10):
        a(f"buffer_load_dwordx4 v[{PQ+4*c}:{PQ+4*c+3}], v1, s[32:35], s38 offen")
        a(f"s_add_u32 s38, s38, {CSTR}")
    a(f"""
    s_lshl_b32 s38, s22, 1
    s_mul_i32 s38, s38, 2560
    s_mul_i32 s39, s21, 320
    s_add_u32 s38, s38, s39
    s_add_u32 s38, s38, {WS_ZS}
    v_lshlrev_b32 v{T}, 2, v0
    v_add_u32 v{T+1}, 256, v{T}
    v_mov_b32 v{T+2}, 0x80000000
    v_cmp_gt_u32 vcc, 16, v0
    s_add_u32 s39, s38, 2560
    s_nop 0
    v_cndmask_b32 v{T+1}, v{T+2}, v{T+1}, vcc
    buffer_load_dword v44, v{T}, s[32:35], s38 offen
    buffer_load_dword v45, v{T+1}, s[32:35], s38 offen
    buffer_load_dword v46, v{T}, s[32:35], s39 offen
    buffer_load_dword v47, v{T+1}, s[32:35], s39 offen
    """)
    a(f"""
    s_lshl_b32 s38, s22, 6
    s_add_u32 s38, s38, s20
    s_mul_i32 s38, s38, 1664
    s_add_u32 s38, s38, {WS_KVS}
    s_add_u32 s39, s38, {32*1664}
    v_lshlrev_b32 v{T}, 4, v0
    v_add_u32 v{T+1}, 1024, v{T}
    v_cmp_gt_u32 vcc, 36, v0
    s_nop 1
    v_cndmask_b32 v{T+1}, v{T+2}, v{T+1}, vcc
    buffer_load_dwordx4 v[48:51], v{T}, s[32:35], s38 offen
    buffer_load_dwordx4 v[52:55], v{T+1}, s[32:35], s38 offen
    buffer_load_dwordx4 v[64:67], v{T}, s[32:35], s39 offen
    buffer_load_dwordx4 v[68:71], v{T+1}, s[32:35], s39 offen
    """)
    a("s_cmp_ge_u32 s22, 5\ns_cbranch_scc1 L_k2_s_nowo")
    a(f"""
    v_lshrrev_b32 v{T+3}, 4, v0
    s_mul_i32 s38, s20, 20
    v_add_u32 v{T+3}, s38, v{T+3}
    v_mul_u32_u24 v{T+3}, 1280, v{T+3}
    v_and_b32 v{T+4}, 15, v0
    v_lshl_add_u32 v{T+3}, v{T+4}, 4, v{T+3}
    s_lshl_b32 s38, s22, 8
    v_add_u32 v{T+3}, s38, v{T+3}
    s_lshl_b32 s39, s22, 13
    s_add_u32 s39, s39, {WOT}
    s_mov_b32 s38, 0
    """)
    for p in range(8):
        a(f"""
        s_add_u32 m0, s39, {1024*p}
        s_nop 0
        buffer_load_dwordx4 v{T+3}, s[28:31], s38 offen lds
        s_add_u32 s38, s38, {4*1280}
        """)
    a.label("L_k2_s_nowo")
    a(f"""
    v_mov_b32 v72, 0
    v_mov_b32 v73, 0
    v_mov_b32 v74, 0
    v_mov_b32 v75, 0
    v_lshlrev_b32 v{T}, 4, v0
    ds_write_b128 v{T}, v[72:75] offset:{KVB}
    ds_write_b128 v{T}, v[72:75] offset:{KVB+1024}
    """)
    a("s_waitcnt vmcnt(0)")
    a(f"""
    v_add_f32 v44, v44, v46
    v_add_f32 v45, v45, v47
    v_lshlrev_b32 v{T}, 2, v0
    s_mul_i32 s38, s22, 384
    v_add_u32 v{T}, s38, v{T}
    ds_write_b32 v{T}, v44 offset:{ZP}
    """)
    a(f"""
    v_cmp_gt_u32 vcc, 16, v0
    s_and_saveexec_b64 s[40:41], vcc
    ds_write_b32 v{T}, v45 offset:{ZP+256}
    s_mov_b64 exec, s[40:41]
    """)
    for k in range(4):
        a(f"v_add_f32 v{48+k}, v{48+k}, v{64+k}")
        a(f"v_add_f32 v{52+k}, v{52+k}, v{68+k}")
    a(f"""
    v_lshlrev_b32 v{T}, 4, v0
    s_mul_i32 s38, s22, 1664
    v_add_u32 v{T}, s38, v{T}
    ds_write_b128 v{T}, v[48:51] offset:{KP}
    v_cmp_gt_u32 vcc, 36, v0
    s_and_saveexec_b64 s[40:41], vcc
    ds_write_b128 v{T}, v[52:55] offset:{KP+1024}
    s_mov_b64 exec, s[40:41]
    s_waitcnt lgkmcnt(0)
    s_barrier
    """)
    a(f"v_lshlrev_b32 v{T}, 2, v0")
    for w in range(8):
        a(f"ds_read_b32 v{44+w}, v{T} offset:{ZP+384*w}")
    a("s_waitcnt lgkmcnt(0)")
    for w in range(1, 8): a(f"v_add_f32 v44, v44, v{44+w}")
    for w in range(8):
        a(f"ds_read_b32 v{46+w}, v{T} offset:{ZP+384*w+256}")
    a("s_waitcnt lgkmcnt(0)")
    a("v_mov_b32 v45, v46")
    for w in range(1, 8): a(f"v_add_f32 v45, v45, v{46+w}")
    a("s_cmp_ge_u32 s22, 2\ns_cbranch_scc1 L_k2_s_nokv")
    a(f"""
    s_lshl_b32 s38, s22, 6
    v_add_u32 v{T+1}, s38, v0
    v_lshlrev_b32 v{T+2}, 4, v{T+1}
    """)
    for w in range(8):
        a(f"ds_read_b128 v[{80+4*w}:{83+4*w}], v{T+2} offset:{KP+1664*w}")
    a("s_waitcnt lgkmcnt(0)")
    for w in range(1, 8):
        for k in range(4): a(f"v_add_f32 v{80+k}, v{80+k}, v{80+4*w+k}")
    a(f"""
    v_cvt_pk_bf16_f32 v80, v80, v81
    v_cvt_pk_bf16_f32 v81, v82, v83
    v_mul_u32_u24 v{T+2}, 13108, v{T+1}
    v_lshrrev_b32 v{T+2}, 16, v{T+2}
    v_mul_u32_u24 v{T+3}, 5, v{T+2}
    v_sub_u32 v{T+3}, v{T+1}, v{T+3}
    v_lshlrev_b32 v{T+2}, 6, v{T+2}
    v_lshl_add_u32 v{T+2}, v{T+3}, 3, v{T+2}
    v_cmp_gt_u32 vcc, 100, v{T+1}
    s_and_saveexec_b64 s[40:41], vcc
    ds_write_b64 v{T+2}, v[80:81] offset:{KVB}
    s_mov_b64 exec, s[40:41]
    """)
    a.label("L_k2_s_nokv")
    U = 80
    a(f"s_mov_b32 s44, {f32(1e-6)}")
    a(f"s_mov_b32 s46, {WS_PQN}")
    a(f"s_nop 0")
    for hh in range(4):
        for k in range(20):
            e = 20*hh + k
            if e < 64: a(f"v_readlane_b32 s{52+k}, v44, {e}")
            else: a(f"v_readlane_b32 s{52+k}, v45, {e-64}")
        for k in range(10):
            d = PQ + 10*hh + k
            a(f"v_lshlrev_b32 v{U+2*k}, 16, v{d}")
            a(f"v_and_b32 v{U+2*k+1}, 0xffff0000, v{d}")
        a(f"v_mov_b32 v{T}, s44")
        a(f"v_mov_b32 v{T+1}, 0")
        for k in range(0, 20, 2):
            a(f"v_fmac_f32 v{T}, s{52+k}, v{U+k}")
            a(f"v_fmac_f32 v{T+1}, s{53+k}, v{U+k+1}")
        a(f"v_add_f32 v{T}, v{T}, v{T+1}")
        a(f"v_rcp_f32 v{T}, v{T}")
        a("s_nop 0")
        for k in range(20): a(f"v_mul_f32 v{U+k}, v{U+k}, v{T}")
        for k in range(10):
            a(f"v_cvt_pk_bf16_f32 v{PQ+10*hh+k}, v{U+2*k}, v{U+2*k+1}")
    for c in range(10):
        a(f"buffer_store_dwordx4 v[{PQ+4*c}:{PQ+4*c+3}], v1, s[32:35], s46 offen")
        a(f"s_add_u32 s46, s46, {CSTR}")
    a("s_waitcnt lgkmcnt(0)\ns_barrier")
    a("s_cmp_ge_u32 s22, 5\ns_cbranch_scc1 L_k2_end")
    KB = 44
    WA = 52
    D = 84
    a(f"""
    v_and_b32 v{120+0}, 15, v0
    v_lshrrev_b32 v{120+1}, 4, v0
    v_lshlrev_b32 v{120+2}, 6, v{120+0}
    v_lshl_add_u32 v{120+2}, v{120+1}, 4, v{120+2}
    ds_read_b128 v[{KB}:{KB+3}], v{120+2} offset:{KVB}
    ds_read_b128 v[{KB+4}:{KB+7}], v{120+2} offset:{KVB+1024}
    v_lshrrev_b32 v{120+3}, 2, v{120+0}
    v_lshl_add_u32 v{120+3}, v{120+1}, 3, v{120+3}
    v_lshlrev_b32 v{120+3}, 8, v{120+3}
    v_and_b32 v{120+4}, 3, v{120+0}
    v_lshl_add_u32 v{120+3}, v{120+4}, 3, v{120+3}
    s_lshl_b32 s39, s22, 13
    s_add_u32 s38, s39, {WOT}
    v_add_u32 v{120+3}, s38, v{120+3}
    """)
    for t in range(8):
        for j in range(2):
            a(f"ds_read_b64_tr_b16 v[{WA+4*t+2*j}:{WA+4*t+2*j+1}], v{120+3} offset:{t*32 + j*1024}")
        if t == 5: a("s_waitcnt lgkmcnt(8)")
    a("s_waitcnt lgkmcnt(0)")
    a(f"""
    v_and_b32 v{120+4}, 1, v{120+1}
    v_lshrrev_b32 v{120+5}, 1, v{120+1}
    v_lshl_add_u32 v{120+5}, v{120+4}, 1, v{120+5}
    v_lshlrev_b32 v{120+5}, 4, v{120+5}
    v_lshl_add_u32 v{120+5}, v{120+0}, 8, v{120+5}
    s_add_u32 s38, s39, {WST}
    v_add_u32 v{120+5}, s38, v{120+5}
    """)
    for dt in range(2):
        for t in range(8):
            a(f"v_mfma_f32_16x16x32_bf16 v[{D+4*t}:{D+4*t+3}], v[{WA+4*t}:{WA+4*t+3}], v[{KB+4*dt}:{KB+4*dt+3}], 0")
        a("s_nop 7")
        for pp in range(4):
            P = 116
            for tt in range(2):
                r = D + 4*(2*pp+tt)
                a(f"v_cvt_pk_bf16_f32 v{P+2*tt}, v{r}, v{r+1}")
                a(f"v_cvt_pk_bf16_f32 v{P+2*tt+1}, v{r+2}, v{r+3}")
            a("s_nop 1")
            a(f"v_permlane16_swap_b32 v{P}, v{P+2}")
            a(f"v_permlane16_swap_b32 v{P+1}, v{P+3}")
            a(f"ds_write_b128 v{120+5}, v[{P}:{P+3}] offset:{dt*4096 + pp*64}")
            a("s_nop 0")
    a("s_waitcnt lgkmcnt(0)")
    a(f"""
    v_lshlrev_b32 v{120+0}, 4, v0
    v_add_u32 v{120+0}, s38, v{120+0}
    v_lshrrev_b32 v{120+1}, 4, v0
    s_mul_i32 s39, s20, 20
    v_add_u32 v{120+1}, s39, v{120+1}
    v_mul_u32_u24 v{120+1}, 1280, v{120+1}
    v_and_b32 v{120+2}, 15, v0
    v_lshl_add_u32 v{120+1}, v{120+2}, 4, v{120+1}
    s_lshl_b32 s39, s22, 8
    s_add_u32 s39, s39, {WS_WP}
    v_add_u32 v{120+1}, s39, v{120+1}
    s_mov_b32 s39, 0
    """)
    for p in range(5):
        a(f"ds_read_b128 v[{44+4*p}:{47+4*p}], v{120+0} offset:{1024*p}")
    for p in range(5):
        a(f"s_waitcnt lgkmcnt({4-p})")
        a(f"buffer_store_dwordx4 v[{44+4*p}:{47+4*p}], v{120+1}, s[32:35], s39 offen")
        a(f"s_add_u32 s39, s39, {4*1280}")
    a("s_endpgm")

def gen_k4(a):
    name = "k4_kernel"; kn = "k4"
    kernel_head(a, name)
    a("s_cmp_ge_u32 s2, 220\ns_cbranch_scc1 L_k4_end")
    stamp(a, 0)
    a(f"s_load_dwordx2 s[4:5], s[0:1], {KA_W4}")
    a(f"s_load_dwordx2 s[6:7], s[0:1], {KA_OUT}")
    a(f"s_load_dwordx2 s[12:13], s[0:1], {KA_WS}")
    a("""
    v_lshrrev_b32 v1, 6, v0
    v_and_b32 v0, 63, v0
    s_mul_i32 s20, s2, 6554
    s_lshr_b32 s20, s20, 16
    s_mul_i32 s21, s20, 10
    s_sub_u32 s21, s2, s21
    v_readfirstlane_b32 s22, v1
    s_waitcnt lgkmcnt(0)
    """)
    srd(a, 32, 12, WS_END)
    srd(a, 24, 12, 216*CSTR, WS_H2)
    srd(a, 28, 4, 1728*1280)
    srd(a, 48, 12, CM, WS_X1)
    srd(a, 52, 12, CM, WS_A)
    srd(a, 56, 6, CM)
    gemm_wg(a, kn, 27, False)
    T = 70; RX = 84; RA_ = 96; G = 108; PK = 112
    a(f"""
    v_and_b32 v{T}, 15, v{LANE}
    v_lshrrev_b32 v{T+1}, 4, v{LANE}
    s_mul_i32 s38, s20, 96
    s_mul_i32 s39, s36, 48
    s_add_u32 s38, s38, s39
    v_add_u32 v{T+2}, s38, v{T}
    v_lshlrev_b32 v{T+2}, 2, v{T+2}
    s_mov_b32 s38, {WS_G}
    """)
    for i in range(3):
        a(f"buffer_load_dword v{G+i}, v{T+2}, s[32:35], s38 offen offset:{64*i}")
    a(f"""
    v_lshrrev_b32 v{T+3}, 1, v{T+1}
    s_lshl_b32 s38, s37, 2
    v_add_u32 v{T+3}, s38, v{T+3}
    v_mul_u32_u24 v{T+3}, 1536, v{T+3}
    v_lshl_add_u32 v{T+3}, v{T}, 4, v{T+3}
    v_and_b32 v{T+4}, 1, v{T+1}
    v_lshl_add_u32 v{T+3}, v{T+4}, 3, v{T+3}
    s_mul_i32 s38, s36, 768
    s_add_u32 s38, s38, {RES}
    v_add_u32 v{T+3}, s38, v{T+3}
    """)
    for i in range(3):
        for tt in range(2):
            n = 2*i+tt
            a(f"ds_read_b64 v[{RX+2*n}:{RX+2*n+1}], v{T+3} offset:{256*i + 3072*tt}")
            a(f"ds_read_b64 v[{RA_+2*n}:{RA_+2*n+1}], v{T+3} offset:{12288 + 256*i + 3072*tt}")
    a(f"""
    s_mul_i32 s38, s36, 48
    v_add_u32 v{T+5}, s38, v{T}
    v_lshrrev_b32 v{T+6}, 1, v{T+5}
    v_and_b32 v{T+6}, 7, v{T+6}
    v_lshrrev_b32 v{T+7}, 1, v{T+1}
    v_lshl_add_u32 v{T+7}, v{T+4}, 1, v{T+7}
    s_lshl_b32 s38, s37, 2
    v_add_u32 v{T+7}, s38, v{T+7}
    v_xor_b32 v{T+7}, v{T+7}, v{T+6}
    v_lshlrev_b32 v{T+7}, 4, v{T+7}
    v_lshl_add_u32 v{T+7}, v{T+5}, 7, v{T+7}
    s_waitcnt vmcnt(0) lgkmcnt(0)
    """)
    for i in range(3):
        P = PK + 4*(i & 1)
        a(f"v_sub_f32 v{T+8}, 1.0, v{G+i}")
        for tt in range(2):
            n = 2*i+tt
            r = acc(i, tt); x = RX + 2*n; y = RA_ + 2*n; t = T+10
            a(f"""
            v_lshlrev_b32 v{t}, 16, v{x}
            v_and_b32 v{t+1}, 0xffff0000, v{x}
            v_lshlrev_b32 v{t+2}, 16, v{x+1}
            v_and_b32 v{t+3}, 0xffff0000, v{x+1}
            v_add_f32 v{r}, v{r}, v{t}
            v_add_f32 v{r+1}, v{r+1}, v{t+1}
            v_add_f32 v{r+2}, v{r+2}, v{t+2}
            v_add_f32 v{r+3}, v{r+3}, v{t+3}
            v_lshlrev_b32 v{t}, 16, v{y}
            v_and_b32 v{t+1}, 0xffff0000, v{y}
            v_lshlrev_b32 v{t+2}, 16, v{y+1}
            v_and_b32 v{t+3}, 0xffff0000, v{y+1}
            v_mul_f32 v{t}, v{t}, v{G+i}
            v_mul_f32 v{t+1}, v{t+1}, v{G+i}
            v_mul_f32 v{t+2}, v{t+2}, v{G+i}
            v_mul_f32 v{t+3}, v{t+3}, v{G+i}
            v_fma_f32 v{r}, v{r}, v{T+8}, v{t}
            v_fma_f32 v{r+1}, v{r+1}, v{T+8}, v{t+1}
            v_fma_f32 v{r+2}, v{r+2}, v{T+8}, v{t+2}
            v_fma_f32 v{r+3}, v{r+3}, v{T+8}, v{t+3}
            v_cvt_pk_bf16_f32 v{P+2*tt}, v{r}, v{r+1}
            v_cvt_pk_bf16_f32 v{P+2*tt+1}, v{r+2}, v{r+3}
            """)
        a("s_nop 1")
        a(f"v_permlane16_swap_b32 v{P}, v{P+2}")
        a(f"v_permlane16_swap_b32 v{P+1}, v{P+3}")
        a(f"ds_write_b128 v{T+7}, v[{P}:{P+3}] offset:{2048*i}")
    a("s_waitcnt lgkmcnt(0)\ns_barrier")
    a(f"""
    v_lshlrev_b32 v{T}, 4, v{LANE}
    s_mul_i32 s38, s22, 3072
    v_add_u32 v{T}, s38, v{T}
    """)
    for j in range(3):
        a(f"ds_read_b128 v[{84+4*j}:{87+4*j}], v{T} offset:{1024*j}")
    a(f"""
    v_lshrrev_b32 v{T+1}, 3, v{LANE}
    s_mul_i32 s38, s20, 96
    s_mul_i32 s39, s22, 24
    s_add_u32 s38, s38, s39
    v_add_u32 v{T+1}, s38, v{T+1}
    v_mul_u32_u24 v{T+1}, 1280, v{T+1}
    s_lshl_b32 s38, s21, 7
    v_add_u32 v{T+1}, s38, v{T+1}
    """)
    for j in range(3):
        a(f"""
        s_mul_i32 s38, s22, 12
        s_add_u32 s38, s38, {4*j}
        v_lshrrev_b32 v{T+2}, 4, v{LANE}
        v_add_u32 v{T+2}, s38, v{T+2}
        v_and_b32 v{T+2}, 7, v{T+2}
        v_and_b32 v{T+3}, 7, v{LANE}
        v_xor_b32 v{T+2}, v{T+2}, v{T+3}
        v_lshl_add_u32 v{T+4+j}, v{T+2}, 4, v{T+1}
        v_add_u32 v{T+4+j}, {j*8*1280}, v{T+4+j}
        """)
    for j in range(3):
        a(f"s_waitcnt lgkmcnt({2-j})")
        a(f"buffer_store_dwordx4 v[{84+4*j}:{87+4*j}], v{T+4+j}, s[56:59], 0 offen")
    stamp(a, 3); stamp_flush(a, 3, "s22", 4)
    a("s_endpgm")
    def res_issue():
        a(f"""
        s_lshl_b32 s44, s21, 18
        s_mul_i32 s45, s22, 3072
        s_add_u32 s45, s45, {RES}
        """)
        for n, sr in enumerate((48, 52)):
            for j in range(3):
                a(f"s_add_u32 m0, s45, {12288*n + 1024*j}\ns_nop 0")
                a(f"buffer_load_dwordx4 v{8+j}, s[{sr}:{sr+3}], s44 offen lds")
    loader(a, kn, 27, False, 6, res_issue)
    a.label("L_k4_end")
    a("s_endpgm")
    return name
```

```python
from common import *

SLOT = 36864
NSLOT = 4
BOFF = 20480
MISC = NSLOT * SLOT
ST_OFF = 0
CS_OFF = 2048
K3_LDS = 163840
NST = 10
def acc(i, tt): return 4*(i*4+tt)
XA, XB = 80, 100
YA, YB = 116, 136
VA, VB = 152, 153
LANE = 255

def reads(SA, SB, ks):
    ra = [f"ds_read_b128 v[{SA+4*i}:{SA+4*i+3}], v{VA} offset:{ks*10240 + 256*i}" for i in range(5)]
    rb = [f"ds_read_b64_tr_b16 v[{SB+4*tt+2*j}:{SB+4*tt+2*j+1}], v{VB+tt} offset:{ks*8192 + j*1024}" for tt in range(4) for j in range(2)]
    return [rb[0], rb[1], ra[0], ra[1], rb[2], rb[3], ra[2], ra[3], rb[4], rb[5], ra[4], rb[6], rb[7]]
def mfmas(SA, SB):
    return [f"v_mfma_f32_16x16x32_bf16 v[{acc(i,tt)}:{acc(i,tt)+3}], v[{SB+4*tt}:{SB+4*tt+3}], v[{SA+4*i}:{SA+4*i+3}], v[{acc(i,tt)}:{acc(i,tt)+3}]"
            for tt in range(4) for i in range(5)]
def interleave(a, ms, rs):
    k = 0
    for m in ms:
        a(m)
        if k < len(rs): a(rs[k]); k += 1

def gen_k3(a):
    name = "k3_kernel"
    kernel_head(a, name)
    a("s_cmp_ge_u32 s2, 256\ns_cbranch_scc1 L_k3_end")
    stamp(a, 0)
    a(f"s_load_dwordx2 s[4:5], s[0:1], {KA_W3}")
    a(f"s_load_dwordx2 s[6:7], s[0:1], {KA_AX}")
    a(f"s_load_dwordx2 s[8:9], s[0:1], {KA_GW}")
    a(f"s_load_dwordx2 s[12:13], s[0:1], {KA_WS}")
    a("""
    v_lshrrev_b32 v1, 6, v0
    v_and_b32 v0, 63, v0
    s_mul_i32 s20, s2, 3450
    s_lshr_b32 s20, s20, 16
    s_mul_i32 s21, s20, 19
    s_sub_u32 s21, s2, s21
    v_readfirstlane_b32 s22, v1
    s_waitcnt lgkmcnt(0)
    """)
    srd(a, 32, 12, WS_END)
    a("s_cmp_ge_u32 s2, 247\ns_cbranch_scc1 L_k3_gate")
    a(f"""
    s_cmp_lt_u32 s21, 14
    s_cselect_b32 s18, 1, 0
    s_cbranch_scc1 L_k3_t1
    s_sub_u32 s21, s21, 14
    s_add_u32 s24, s12, {WS_PQN}
    s_addc_u32 s25, s13, 0
    s_add_u32 s28, s12, {WS_WP}
    s_addc_u32 s29, s13, 0
    s_mov_b32 s30, 819200
    s_movk_i32 s15, 1280
    s_branch L_k3_t2
    """)
    a.label("L_k3_t1")
    a(f"""
    s_add_u32 s24, s12, {WS_X1}
    s_addc_u32 s25, s13, 0
    s_mov_b32 s28, s4
    s_mov_b32 s29, s5
    s_mov_b32 s30, {640*3456}
    s_movk_i32 s15, 3456
    """)
    a.label("L_k3_t2")
    a(f"s_mov_b32 s26, {CM}\ns_mov_b32 s27, {SRD3:#x}\ns_mov_b32 s31, {SRD3:#x}")
    a("s_cmp_ge_u32 s22, 4\ns_cbranch_scc1 L_k3_loader")
    compute(a)
    loader(a)
    gate(a)
    a.label("L_k3_end")
    a("s_endpgm")
    return name

def compute(a):
    T = 160
    a(f"""
    v_mov_b32 v{LANE}, v0
    s_lshr_b32 s36, s22, 1
    s_and_b32 s37, s22, 1
    v_and_b32 v{T}, 15, v0
    v_lshrrev_b32 v{T+1}, 4, v0
    v_mul_u32_u24 v{T+2}, 2560, v{T+1}
    v_lshl_add_u32 v{T+2}, v{T}, 4, v{T+2}
    s_mul_i32 s38, s36, 1280
    v_add_u32 v{VA}, s38, v{T+2}
    v_lshrrev_b32 v{T+2}, 2, v{T}
    v_lshlrev_b32 v{T+3}, 3, v{T+1}
    v_add_u32 v{T+3}, v{T+3}, v{T+2}
    v_lshlrev_b32 v{T+3}, 8, v{T+3}
    v_and_b32 v{T+4}, 3, v{T}
    v_lshl_add_u32 v{T+3}, v{T+4}, 3, v{T+3}
    v_add_u32 v{T+3}, {BOFF}, v{T+3}
    v_and_b32 v{T+4}, 1, v{T+1}
    v_xor_b32 v{T+4}, s37, v{T+4}
    v_lshl_add_u32 v{T+3}, v{T+4}, 7, v{T+3}
    """)
    for tt in range(4):
        a(f"v_xor_b32 v{T+5}, {tt}, v{T+2}")
        a(f"v_lshl_add_u32 v{VB+tt}, v{T+5}, 5, v{T+3}")
    for r in range(80): a(f"v_mov_b32 v{r}, 0")
    a("s_mov_b32 s40, 0")
    a("s_barrier")
    stamp(a, 1)
    for r in reads(XA, XB, 0): a(r)
    a("s_waitcnt lgkmcnt(0)")
    a.label("L_k3_main")
    interleave(a, mfmas(XA, XB), reads(YA, YB, 1))
    a(f"""
    s_add_u32 s40, s40, 1
    s_and_b32 s41, s40, 3
    s_mov_b32 s42, {SLOT}
    s_cmp_eq_u32 s41, 0
    s_cselect_b32 s42, {(-3*SLOT) & 0xffffffff:#x}, s42
    s_cmp_eq_u32 s40, {NST}
    s_waitcnt lgkmcnt(0)
    v_add_u32 v{VA}, s42, v{VA}
    v_add_u32 v{VB}, s42, v{VB}
    v_add_u32 v{VB+1}, s42, v{VB+1}
    v_add_u32 v{VB+2}, s42, v{VB+2}
    v_add_u32 v{VB+3}, s42, v{VB+3}
    s_cbranch_scc1 L_k3_last
    s_barrier
    """)
    interleave(a, mfmas(YA, YB), reads(XA, XB, 0))
    a("s_waitcnt lgkmcnt(0)\ns_branch L_k3_main")
    a.label("L_k3_last")
    for m in mfmas(YA, YB): a(m)
    stamp(a, 2)
    VO = 192
    a(f"""
    v_lshrrev_b32 v{T+6}, 4, v{LANE}
    v_and_b32 v{T+5}, 15, v{LANE}
    v_and_b32 v{T+7}, 1, v{T+6}
    v_lshrrev_b32 v{T+8}, 1, v{T+6}
    v_lshl_add_u32 v{T+8}, v{T+7}, 1, v{T+8}
    s_lshl_b32 s38, s21, 4
    s_lshl_b32 s39, s37, 3
    s_add_u32 s38, s38, s39
    v_add_u32 v{T+8}, s38, v{T+8}
    v_lshlrev_b32 v{T+8}, 15, v{T+8}
    s_mul_i32 s38, s20, 160
    s_mul_i32 s39, s36, 80
    s_add_u32 s38, s38, s39
    v_add_u32 v{T+5}, s38, v{T+5}
    """)
    for i in range(5):
        a(f"""
        v_add_u32 v{T+9}, {16*i}, v{T+5}
        v_cmp_gt_u32 vcc, 0x800, v{T+9}
        v_lshl_add_u32 v{T+9}, v{T+9}, 4, v{T+8}
        v_mov_b32 v{T+10}, 0x80000000
        v_cndmask_b32 v{VO+i}, v{T+10}, v{T+9}, vcc
        """)
    a(f"""
    s_cmp_eq_u32 s18, 1
    s_mov_b32 s44, {WS_A}
    s_cselect_b32 s44, {WS_H2}, s44
    s_mov_b32 s46, {CM}
    s_cselect_b32 s46, {216*CSTR}, s46
    s_add_u32 s44, s12, s44
    s_addc_u32 s45, s13, 0
    s_mov_b32 s47, {SRD3:#x}
    s_mov_b32 s43, {4*CSTR}
    s_cmp_eq_u32 s18, 1
    s_cbranch_scc1 L_k3_epi_h
    """)
    PK = 176
    def store_all(act):
        n = 0
        for i in range(5):
            for pp in range(2):
                P = PK + 4*(n & 1); n += 1
                act(i, 2*pp, P); act(i, 2*pp+1, P+2)
                a("s_nop 1")
                a(f"v_permlane16_swap_b32 v{P}, v{P+2}")
                a(f"v_permlane16_swap_b32 v{P+1}, v{P+3}")
                so = "0" if pp == 0 else "s43"
                a(f"buffer_store_dwordx4 v[{P}:{P+3}], v{VO+i}, s[44:47], {so} offen")
    def act_a(i, tt, P):
        r = acc(i, tt)
        a(f"v_cvt_pk_bf16_f32 v{P}, v{r}, v{r+1}")
        a(f"v_cvt_pk_bf16_f32 v{P+1}, v{r+2}, v{r+3}")
    store_all(act_a)
    stamp(a, 3); stamp_flush(a, 2, "s22", 4)
    a("s_endpgm")
    a.label("L_k3_epi_h")
    STA, CSR, KC = 80, 96, 120
    a("s_barrier")
    stamp(a, 5)
    a(f"""
    v_and_b32 v{T}, 15, v{LANE}
    s_mul_i32 s42, s36, 80
    v_add_u32 v{T}, s42, v{T}
    v_lshlrev_b32 v{T}, 3, v{T}
    v_add_u32 v{T}, {MISC}, v{T}
    v_lshrrev_b32 v{T+1}, 4, v{LANE}
    v_lshlrev_b32 v{T+1}, 4, v{T+1}
    s_lshl_b32 s42, s37, 8
    s_add_u32 s42, s42, {MISC}
    v_add_u32 v{T+1}, s42, v{T+1}
    """)
    for i in range(5): a(f"ds_read_b64 v[{STA+2*i}:{STA+2*i+1}], v{T} offset:{ST_OFF + 128*i}")
    for tt in range(4): a(f"ds_read_b128 v[{CSR+4*tt}:{CSR+4*tt+3}], v{T+1} offset:{CS_OFF + 64*tt}")
    a(f"v_mov_b32 v{KC}, {f32(GC0)}\nv_mov_b32 v{KC+1}, {f32(GC1)}")
    a("s_waitcnt lgkmcnt(0)")
    def act_h(i, tt, P):
        r = acc(i, tt); m = STA + 2*i; c = CSR + 4*tt; t = 184
        for h in (0, 2):
            a(f"v_pk_fma_f32 v[{r+h}:{r+h+1}], v[{c+h}:{c+h+1}], v[{m}:{m+1}], v[{r+h}:{r+h+1}] op_sel_hi:[1,0,1] neg_lo:[0,1,0] neg_hi:[0,1,0]")
        for h in (0, 2):
            a(f"v_pk_mul_f32 v[{r+h}:{r+h+1}], v[{r+h}:{r+h+1}], v[{m}:{m+1}] op_sel:[0,1] op_sel_hi:[1,1]")
        for h in (0, 2):
            a(f"v_pk_mul_f32 v[{t+h}:{t+h+1}], v[{r+h}:{r+h+1}], v[{r+h}:{r+h+1}]")
        for h in (0, 2):
            a(f"v_pk_fma_f32 v[{t+h}:{t+h+1}], v[{t+h}:{t+h+1}], v[{KC}:{KC+1}], v[{KC}:{KC+1}] op_sel:[0,1,0] op_sel_hi:[1,1,0]")
        for h in (0, 2):
            a(f"v_pk_mul_f32 v[{t+h}:{t+h+1}], v[{t+h}:{t+h+1}], v[{r+h}:{r+h+1}]")
        for k in range(4): a(f"v_exp_f32 v{t+k}, v{t+k}")
        for h in (0, 2):
            a(f"v_pk_add_f32 v[{t+h}:{t+h+1}], v[{t+h}:{t+h+1}], 1.0 op_sel_hi:[1,0]")
        for k in range(4): a(f"v_rcp_f32 v{t+k}, v{t+k}")
        a("s_nop 0")
        for h in (0, 2):
            a(f"v_pk_mul_f32 v[{r+h}:{r+h+1}], v[{r+h}:{r+h+1}], v[{t+h}:{t+h+1}]")
        a(f"v_cvt_pk_bf16_f32 v{P}, v{r}, v{r+1}")
        a(f"v_cvt_pk_bf16_f32 v{P+1}, v{r+2}, v{r+3}")
    store_all(act_h)
    stamp(a, 3); stamp_flush(a, 2, "s22", 4)
    a("s_endpgm")

def loader(a):
    a.label("L_k3_loader")
    VA_, VB_ = 2, 7
    T = 11
    a("s_sub_u32 s22, s22, 4")
    a("s_mul_i32 s36, s20, 160\ns_lshl_b32 s37, s22, 16")
    for j in range(5):
        a(f"""
        v_add_u32 v{T}, {64*j}, v0
        v_cmp_le_u32 vcc, 0xa0, v{T}
        v_subrev_u32 v{T+1}, 0xa0, v{T}
        v_mov_b32 v{T+2}, {CSTR}
        v_cndmask_b32 v{T}, v{T}, v{T+1}, vcc
        v_cndmask_b32 v{T+2}, 0, v{T+2}, vcc
        v_add_u32 v{T}, s36, v{T}
        v_lshl_add_u32 v{T}, v{T}, 4, v{T+2}
        v_add_u32 v{VA_+j}, s37, v{T}
        """)
    a(f"""
    v_lshrrev_b32 v{T}, 4, v0
    s_lshl_b32 s36, s22, 4
    v_add_u32 v{T+1}, s36, v{T}
    v_mul_lo_u32 v{T+1}, v{T+1}, s15
    s_lshl_b32 s36, s21, 8
    v_add_u32 v{T+1}, s36, v{T+1}
    v_lshlrev_b32 v{T}, 1, v{T}
    v_and_b32 v{T+2}, 15, v0
    v_xor_b32 v{T}, v{T}, v{T+2}
    s_lshl_b32 s36, s15, 2
    """)
    for j in range(4):
        if j == 2: a(f"v_xor_b32 v{T}, 8, v{T}")
        a(f"v_lshl_add_u32 v{VB_+j}, v{T}, 4, v{T+1}")
        if j < 3: a(f"v_add_u32 v{T+1}, s36, v{T+1}")
    a(f"""
    s_mov_b32 s36, 0
    s_mov_b32 s37, 0
    s_mov_b32 s40, 0
    s_lshl_b32 s41, s15, 6
    s_mul_i32 s42, s22, 5120
    s_lshl_b32 s43, s22, 12
    s_add_u32 s43, s43, {BOFF}
    """)
    def issue():
        a(f"""
        s_mul_i32 s38, s40, {SLOT}
        s_add_u32 s39, s38, s42
        s_mov_b32 m0, s39
        s_add_u32 s38, s38, s43
        """)
        for j in range(5):
            a(f"buffer_load_dwordx4 v{VA_+j}, s[24:27], s36 offen lds")
            if j < 4: a("s_add_u32 m0, m0, 1024\ns_nop 0")
        a("s_mov_b32 m0, s38")
        a(f"s_add_u32 s36, s36, {8*CSTR}")
        for j in range(4):
            a(f"buffer_load_dwordx4 v{VB_+j}, s[28:31], s37 offen lds")
            if j < 3: a("s_add_u32 m0, m0, 1024\ns_nop 0")
        a("s_add_u32 s37, s37, s41")
        a("s_add_u32 s40, s40, 1\ns_and_b32 s40, s40, 3")
    a("s_mov_b32 s46, 0")
    a.label("L_k3_ld_pro")
    issue()
    a("s_add_u32 s46, s46, 1\ns_cmp_lt_u32 s46, 3\ns_cbranch_scc1 L_k3_ld_pro")
    a("s_cmp_eq_u32 s18, 1\ns_cbranch_scc1 L_k3_ldh")
    a("s_mov_b32 s44, 0")
    a.label("L_k3_ld_loop")
    a("s_waitcnt vmcnt(18)\ns_barrier")
    issue()
    a("s_add_u32 s44, s44, 1\ns_cmp_lt_u32 s44, 7\ns_cbranch_scc1 L_k3_ld_loop")
    a("s_waitcnt vmcnt(18)\ns_barrier\ns_waitcnt vmcnt(9)\ns_barrier\ns_waitcnt vmcnt(0)\ns_barrier")
    a("s_endpgm")
    a.label("L_k3_ldh")
    SUM, SQ, CS = 20, 23, 26
    RA, RB = 40, 64
    VSA, VC, ONES = 80, 81, 82
    a(f"""
    v_lshrrev_b32 v{T}, 4, v0
    v_and_b32 v{T+1}, 15, v0
    v_mul_u32_u24 v{T+2}, 2560, v{T}
    v_lshl_add_u32 v{T+2}, v{T+1}, 4, v{T+2}
    s_lshl_b32 s46, s22, 8
    v_add_u32 v{VSA}, s46, v{T+2}
    v_and_b32 v{T+2}, 1, v{T}
    v_lshrrev_b32 v{T+3}, 1, v{T}
    v_lshlrev_b32 v{T+3}, 2, v{T+3}
    v_lshl_add_u32 v{T+3}, v{T+2}, 3, v{T+3}
    v_lshrrev_b32 v{T+4}, 2, v{T+1}
    v_add_u32 v{T+3}, v{T+3}, v{T+4}
    v_lshlrev_b32 v{T+3}, 8, v{T+3}
    v_and_b32 v{T+5}, 3, v{T+1}
    v_lshl_add_u32 v{T+3}, v{T+5}, 3, v{T+3}
    v_add_u32 v{T+3}, {BOFF}, v{T+3}
    v_lshl_add_u32 v{T+4}, v{T+2}, 2, v{T+4}
    v_xor_b32 v{T+4}, s22, v{T+4}
    v_lshl_add_u32 v{VC}, v{T+4}, 5, v{T+3}
    v_xor_b32 v{T+4}, 4, v{T+4}
    v_lshl_add_u32 v{VC+2}, v{T+4}, 5, v{T+3}
    v_mov_b32 v{ONES}, 0x3f803f80
    """)
    VC2 = VC + 2
    for r in range(SUM, CS+2): a(f"v_mov_b32 v{r}, 0")
    a("s_mov_b32 s44, 0\ns_mov_b32 s45, 0")
    def stats():
        a(f"""
        s_mul_i32 s46, s45, {SLOT}
        v_add_u32 v{T}, s46, v{VSA}
        v_add_u32 v{T+1}, s46, v{VC}
        v_add_u32 v{T+2}, s46, v{VC2}
        s_add_u32 s45, s45, 1
        s_and_b32 s45, s45, 3
        """)
        for n in range(3):
            for hf in range(2):
                a(f"ds_read_b128 v[{RA+8*n+4*hf}:{RA+8*n+4*hf+3}], v{T} offset:{n*1024 + hf*10240}")
        for n in range(2):
            for m in range(4):
                a(f"ds_read_b64_tr_b16 v[{RB+8*n+2*m}:{RB+8*n+2*m+1}], v{T+1+n} offset:{m*16*256}")
        a("s_waitcnt lgkmcnt(8)")
        for d in range(8):
            for n in range(3):
                a(f"v_dot2_f32_bf16 v{SUM+n}, v{RA+8*n+d}, v{ONES}, v{SUM+n}")
                a(f"v_dot2_f32_bf16 v{SQ+n}, v{RA+8*n+d}, v{RA+8*n+d}, v{SQ+n}")
        a("s_waitcnt lgkmcnt(0)")
        for d in range(8):
            for n in range(2):
                a(f"v_dot2_f32_bf16 v{CS+n}, v{RB+8*n+d}, v{ONES}, v{CS+n}")
    a.label("L_k3_ldh_loop")
    a("s_waitcnt vmcnt(18)\ns_barrier")
    issue()
    stats()
    a("s_add_u32 s44, s44, 1\ns_cmp_lt_u32 s44, 7\ns_cbranch_scc1 L_k3_ldh_loop")
    a("s_mov_b32 s44, 18")
    a.label("L_k3_ldh_tail")
    a("s_cmp_eq_u32 s44, 18\ns_cbranch_scc0 L_k3_ldh_t1\ns_waitcnt vmcnt(18)\ns_branch L_k3_ldh_t3")
    a.label("L_k3_ldh_t1")
    a("s_cmp_eq_u32 s44, 9\ns_cbranch_scc0 L_k3_ldh_t2\ns_waitcnt vmcnt(9)\ns_branch L_k3_ldh_t3")
    a.label("L_k3_ldh_t2")
    a("s_waitcnt vmcnt(0)")
    a.label("L_k3_ldh_t3")
    a("s_barrier")
    stats()
    a("s_cmp_eq_u32 s44, 0\ns_cselect_b32 s48, 1, 0\ns_sub_u32 s44, s44, 9\ns_cmp_eq_u32 s48, 0\ns_cbranch_scc1 L_k3_ldh_tail")
    a("s_nop 3")
    lane_group_sum(a, list(range(SUM, CS+2)), RA)
    a(f"s_mov_b32 s46, {f32(1.0/640)}")
    a(f"s_mov_b32 s47, {f32(1e-5)}")
    a(f"""
    v_and_b32 v{T}, 15, v0
    v_lshlrev_b32 v{T+1}, 3, v{T}
    s_lshl_b32 s48, s22, 7
    s_add_u32 s48, s48, {MISC}
    v_add_u32 v{T+1}, s48, v{T+1}
    """)
    for n in range(3):
        m = RB + 2*n
        a(f"""
        v_mul_f32 v{m}, s46, v{SUM+n}
        v_mul_f32 v{m+1}, s46, v{SQ+n}
        v_fma_f32 v{m+1}, -v{m}, v{m}, v{m+1}
        v_add_f32 v{m+1}, s47, v{m+1}
        v_rsq_f32 v{m+1}, v{m+1}
        s_nop 0
        ds_write_b64 v{T+1}, v[{m}:{m+1}] offset:{ST_OFF + 512*n}
        """)
    a(f"""
    v_lshlrev_b32 v{T+1}, 2, v{T}
    s_lshl_b32 s48, s22, 6
    s_add_u32 s48, s48, {MISC}
    v_add_u32 v{T+1}, s48, v{T+1}
    ds_write_b32 v{T+1}, v{CS} offset:{CS_OFF}
    ds_write_b32 v{T+1}, v{CS+1} offset:{CS_OFF+256}
    s_waitcnt lgkmcnt(0)
    s_barrier
    s_endpgm
    """)

def gate(a):
    a.label("L_k3_gate")
    srd(a, 24, 6, CM)
    srd(a, 28, 8, 1280)
    T = 60
    a(f"""
    s_sub_u32 s20, s2, 247
    s_lshl_b32 s20, s20, 3
    s_add_u32 s20, s20, s22
    v_and_b32 v{T}, 15, v0
    v_lshlrev_b32 v{T}, 4, v{T}
    v_lshrrev_b32 v{T+1}, 4, v0
    v_mul_u32_u24 v{T+2}, 1280, v{T+1}
    v_add_u32 v{T+2}, v{T+2}, v{T}
    """)
    for j in range(5):
        a(f"buffer_load_dwordx4 v[{4+4*j}:{7+4*j}], v{T}, s[28:31], 0 offen offset:{256*j}")
    a(f"s_mov_b32 s44, {f32(-LOG2E)}")
    a.label("L_k3_gate_loop")
    a("s_mul_i32 s36, s20, 5120")
    for j in range(5):
        a(f"buffer_load_dwordx4 v[{24+4*j}:{27+4*j}], v{T+2}, s[24:27], s36 offen offset:{256*j}")
    a(f"v_mov_b32 v{T+4}, 0\nv_mov_b32 v{T+5}, 0")
    a("s_waitcnt vmcnt(0)")
    for j in range(5):
        for d in range(4):
            a(f"v_dot2_f32_bf16 v{T+4+(d&1)}, v{24+4*j+d}, v{4+4*j+d}, v{T+4+(d&1)}")
    a("s_nop 2")
    a(f"v_add_f32 v{T+4}, v{T+4}, v{T+5}")
    a("s_nop 1")
    for step in ("row_ror:8", "row_ror:4", "row_ror:2", "row_ror:1"):
        a(f"v_add_f32_dpp v{T+4}, v{T+4}, v{T+4} {step} row_mask:0xf bank_mask:0xf")
        a("s_nop 1")
    a(f"""
    v_mul_f32 v{T+4}, s44, v{T+4}
    v_exp_f32 v{T+4}, v{T+4}
    s_nop 0
    v_add_f32 v{T+4}, 1.0, v{T+4}
    v_rcp_f32 v{T+4}, v{T+4}
    s_lshl_b32 s36, s20, 4
    s_add_u32 s36, s36, {WS_G}
    v_lshlrev_b32 v{T+5}, 2, v{T+1}
    buffer_store_dword v{T+4}, v{T+5}, s[32:35], s36 offen
    s_add_u32 s20, s20, 72
    s_cmp_lt_u32 s20, 512
    s_cbranch_scc1 L_k3_gate_loop
    s_endpgm
    """)
```

```python
import sys
from k1 import gen_k1, K1_LDS
from k24 import gen_k2, gen_k4, K24_LDS
from k3 import gen_k3, K3_LDS
from common import *
out = sys.argv[1] if len(sys.argv) > 1 else "full.s"
ref = open("cdna_kernels/"+NAME+".s.ref").read().split("\n")
hdr = [l for l in ref if l.startswith(";") and "@launch" not in l and "Override launch" not in l and "grid=ceil" not in l]
a = Asm()
n1 = gen_k1(a); n2 = gen_k2(a); n3 = gen_k3(a); n4 = gen_k4(a)
L = [(n1, 256, K1_LDS), (n2, 256, K24_LDS), (n3, 256, K3_LDS), (n4, 240, K24_LDS)]
extra = sys.argv[2:]
txt = "\n".join(hdr[:13]) + "\n" + "".join(f"; @launch kernel={n} grid=({g},1,1) block=(512,1,1) lds={l}\n" for n, g, l in L)
txt += ".amdgcn_target \"amdgcn-amd-amdhsa--gfx950\"\n.text\n" + a.text() + ".section .rodata,\"a\"\n" + "".join(kd(n, sgpr=100) for n, _, _ in L)
open(out, "w").write(txt)
check(a.text())
print("bytes:", len(txt))
```

```python
from asmlib import *
NAME = "gated_mix__linear_attn_block__mixer_s_mlp__prompt"
KA_AX, KA_WQKV, KA_WO, KA_BX, KA_W1, KA_W2, KA_W3, KA_W4, KA_GW, KA_OUT, KA_DBG, KA_WS = [8*i for i in range(12)]
CSTR = 32768
CM   = 80 * CSTR
WS_PQ  = 0
WS_H   = CM
WS_X1  = 2 * CM
WS_PQN = 3 * CM
WS_A   = 4 * CM
WS_H2  = 5 * CM
WS_WP  = WS_H2 + 216 * CSTR
WS_KVS = WS_WP + 819200
WS_ZS  = WS_KVS + 16 * 32 * 1664
WS_G   = WS_ZS + 16 * 640 * 4
WS_XST = WS_G + 8192
WS_STAMP = WS_XST + 10 * 2048 * 8
WS_END = WS_STAMP + 4*65536 + 4*262144
SRD3 = 0x20000

def srd(a, dst, ptr, nbytes, off=0):
    if off:
        a(f"s_add_u32 s{dst}, s{ptr}, {off}")
        a(f"s_addc_u32 s{dst+1}, s{ptr+1}, 0")
    else:
        a(f"s_mov_b32 s{dst}, s{ptr}")
        a(f"s_mov_b32 s{dst+1}, s{ptr+1}")
    a(f"s_mov_b32 s{dst+2}, {nbytes}")
    a(f"s_mov_b32 s{dst+3}, {SRD3:#x}")

def kernel_head(a, name):
    a.raw(f".globl {name}")
    a.raw(".p2align 8")
    a.raw(f".type {name},@function")
    a.raw(f"{name}:")

def kd(name, vgpr=256, sgpr=96):
    return f""".p2align 6
.amdhsa_kernel {name}
  .amdhsa_next_free_vgpr {vgpr}
  .amdhsa_next_free_sgpr {sgpr}
  .amdhsa_accum_offset {(vgpr+3)//4*4}
  .amdhsa_group_segment_fixed_size 0
  .amdhsa_kernarg_size 96
  .amdhsa_user_sgpr_count 2
  .amdhsa_user_sgpr_kernarg_segment_ptr 1
  .amdhsa_system_sgpr_workgroup_id_x 1
.end_amdhsa_kernel
"""
import struct, math
def f32(x):
    return "0x%08x" % struct.unpack("<I", struct.pack("<f", x))[0]
LOG2E = 1.4426950408889634
GC0 = -2.0 * LOG2E * math.sqrt(2.0 / math.pi)
GC1 = GC0 * 0.044715

def csel(a, dst, x, y):
    a(f"s_mov_b32 {dst}, {y}")
    a(f"s_cselect_b32 {dst}, {x}, {dst}")

import os
STAMP = os.environ.get("STAMP","0") in ("1","2")
STAMPOP = "s_memtime" if os.environ.get("STAMP","0")=="2" else "s_memrealtime"
def stamp(a, n):
    if STAMP: a(f"{STAMPOP} s[{64+2*n}:{65+2*n}]")
def stamp_flush(a, kidx, wave_sgpr, nst, ws_srd=32, vt=250):
    if not STAMP: return
    a("s_waitcnt vmcnt(0)")
    a(f"{STAMPOP} s[{64+2*nst}:{65+2*nst}]")
    a("s_waitcnt lgkmcnt(0)")
    a(f"s_lshl_b32 s90, s2, 3\ns_add_u32 s90, s90, {wave_sgpr}\ns_lshl_b32 s90, s90, 5")
    a(f"s_add_u32 s90, s90, {WS_STAMP + kidx*65536}")
    a(f"v_mov_b32 v{vt}, s90")
    for n in range(7):
        a(f"v_mov_b32 v{vt+1}, s{64+2*n}")
        a(f"buffer_store_dword v{vt+1}, v{vt}, s[{ws_srd}:{ws_srd+3}], 0 offen offset:{4*n}")
        a("s_nop 0")

def lane_group_sum(a, rs, tmp):
    for op in ("v_permlane16_swap_b32", "v_permlane32_swap_b32"):
        for k, r in enumerate(rs): a(f"v_mov_b32 v{tmp+k}, v{r}")
        a("s_nop 1")
        for k, r in enumerate(rs): a(f"{op} v{tmp+k}, v{r}")
        a("s_nop 1")
        for k, r in enumerate(rs): a(f"v_add_f32 v{r}, v{r}, v{tmp+k}")
        a("s_nop 0")

STSC = os.environ.get("STSC", "")
if STSC and not STSC.startswith(" "): STSC = " " + STSC.replace("_", " ")
EXP = os.environ.get("EXP", "")

def interleave2(a, ms, fill, first=2, nfirst=None):
    k = 0
    for m in ms:
        a(m)
        for _ in range(first):
            if k < len(fill): a(fill[k]); k += 1
    while k < len(fill): a(fill[k]); k += 1

def gelu4(a, r, m, c, t, KC):
    for h in (0, 2):
        a(f"v_pk_fma_f32 v[{r+h}:{r+h+1}], v[{c+h}:{c+h+1}], v[{m}:{m+1}], v[{r+h}:{r+h+1}] op_sel_hi:[1,0,1] neg_lo:[0,1,0] neg_hi:[0,1,0]")
    for h in (0, 2):
        a(f"v_pk_mul_f32 v[{r+h}:{r+h+1}], v[{r+h}:{r+h+1}], v[{m}:{m+1}] op_sel:[0,1] op_sel_hi:[1,1]")
    for h in (0, 2):
        a(f"v_pk_mul_f32 v[{t+h}:{t+h+1}], v[{r+h}:{r+h+1}], v[{r+h}:{r+h+1}]")
    for h in (0, 2):
        a(f"v_pk_fma_f32 v[{t+h}:{t+h+1}], v[{t+h}:{t+h+1}], v[{KC}:{KC+1}], v[{KC}:{KC+1}] op_sel:[0,1,0] op_sel_hi:[1,1,0]")
    for h in (0, 2):
        a(f"v_pk_mul_f32 v[{t+h}:{t+h+1}], v[{t+h}:{t+h+1}], v[{r+h}:{r+h+1}]")
    for k in range(4): a(f"v_exp_f32 v{t+k}, v{t+k}")
    a("s_nop 0")
    for h in (0, 2):
        a(f"v_pk_add_f32 v[{t+h}:{t+h+1}], v[{t+h}:{t+h+1}], 1.0 op_sel_hi:[1,0]")
    for k in range(4): a(f"v_rcp_f32 v{t+k}, v{t+k}")
    a("s_nop 0")
    for h in (0, 2):
        a(f"v_pk_mul_f32 v[{r+h}:{r+h+1}], v[{r+h}:{r+h+1}], v[{t+h}:{t+h+1}]")

def gelu_n(a, rs, ms, cs, t, KC):
    n = len(rs)
    G = range(n)
    for i in G:
        for h in (0, 2):
            r, m, c = rs[i], ms[i], cs[i]
            a(f"v_pk_fma_f32 v[{r+h}:{r+h+1}], v[{c+h}:{c+h+1}], v[{m}:{m+1}], v[{r+h}:{r+h+1}] op_sel_hi:[1,0,1] neg_lo:[0,1,0] neg_hi:[0,1,0]")
    for i in G:
        for h in (0, 2):
            r, m = rs[i], ms[i]
            a(f"v_pk_mul_f32 v[{r+h}:{r+h+1}], v[{r+h}:{r+h+1}], v[{m}:{m+1}] op_sel:[0,1] op_sel_hi:[1,1]")
    for i in G:
        for h in (0, 2):
            r = rs[i]; tt = t + 4*i
            a(f"v_pk_mul_f32 v[{tt+h}:{tt+h+1}], v[{r+h}:{r+h+1}], v[{r+h}:{r+h+1}]")
    for i in G:
        for h in (0, 2):
            tt = t + 4*i
            a(f"v_pk_fma_f32 v[{tt+h}:{tt+h+1}], v[{tt+h}:{tt+h+1}], v[{KC}:{KC+1}], v[{KC}:{KC+1}] op_sel:[0,1,0] op_sel_hi:[1,1,0]")
    for i in G:
        for h in (0, 2):
            r = rs[i]; tt = t + 4*i
            a(f"v_pk_mul_f32 v[{tt+h}:{tt+h+1}], v[{tt+h}:{tt+h+1}], v[{r+h}:{r+h+1}]")
    for i in G:
        for k in range(4): a(f"v_exp_f32 v{t+4*i+k}, v{t+4*i+k}")
    if n == 1: a("s_nop 0")
    for i in G:
        for h in (0, 2):
            tt = t + 4*i
            a(f"v_pk_add_f32 v[{tt+h}:{tt+h+1}], v[{tt+h}:{tt+h+1}], 1.0 op_sel_hi:[1,0]")
    for i in G:
        for k in range(4): a(f"v_rcp_f32 v{t+4*i+k}, v{t+4*i+k}")
    if n == 1: a("s_nop 0")
    for i in G:
        for h in (0, 2):
            r = rs[i]; tt = t + 4*i
            a(f"v_pk_mul_f32 v[{r+h}:{r+h+1}], v[{r+h}:{r+h+1}], v[{tt+h}:{tt+h+1}]")

def phi_n(a, regs, t, sL, sE):
    n = len(regs)
    for k, r in enumerate(regs): a(f"v_min_f32 v{t+k}, 0, v{r}")
    for k, r in enumerate(regs): a(f"v_mul_f32 v{t+k}, {sL}, v{t+k}")
    for k, r in enumerate(regs): a(f"v_exp_f32 v{t+k}, v{t+k}")
    for k, r in enumerate(regs): a(f"v_max_f32 v{r}, 0, v{r}")
    for k, r in enumerate(regs): a(f"v_add_f32 v{t+k}, {sE}, v{t+k}")
    for k, r in enumerate(regs): a(f"v_add_f32 v{r}, v{r}, v{t+k}")

def idx_copy(a, dst, src, n, sidx):
    a(f"s_set_gpr_idx_on {sidx}, 0x1")
    a("s_nop 0")
    for k in range(n): a(f"v_mov_b32 v{dst+k}, v{src+k}")
    a("s_set_gpr_idx_off")

BSTAMP = os.environ.get("BSTAMP","0")=="1"
def bstamp(a, idx_sgpr, vreg=200):
    if BSTAMP:
        a(f"s_memtime s[92:93]\ns_waitcnt lgkmcnt(0)\nv_mov_b32 v{vreg+2}, s92\nv_cmp_eq_u32 vcc, {idx_sgpr}, v0\ns_nop 1\nv_cndmask_b32 v{vreg}, v{vreg}, v{vreg+2}, vcc")
def bstamp_flush(a, kidx, wave_sgpr, ws_srd=32, vreg=200):
    if BSTAMP:
        a(f"s_lshl_b32 s90, s2, 3\ns_add_u32 s90, s90, {wave_sgpr}\ns_lshl_b32 s90, s90, 7")
        a(f"s_add_u32 s90, s90, {WS_STAMP + 4*65536 + kidx*262144}")
        a(f"v_lshlrev_b32 v{vreg+1}, 2, v0\nv_add_u32 v{vreg+1}, s90, v{vreg+1}")
        a(f"v_cmp_gt_u32 vcc, 32, v0\ns_and_saveexec_b64 s[94:95], vcc")
        a(f"buffer_store_dword v{vreg}, v{vreg+1}, s[{ws_srd}:{ws_srd+3}], 0 offen")
        a("s_mov_b64 exec, s[94:95]")

def gidx_on(a, sidx, mode):
    a(f"s_set_gpr_idx_on {sidx}, {mode:#x}")
    a("s_nop 0")
def gidx_off(a):
    a("s_set_gpr_idx_off")

def phi_idx(a, accs, sidx, T1, T2, vL, vZ, sEps):
    n = len(accs)
    gidx_on(a, sidx, 1)
    for k, r in enumerate(accs):
        a(f"v_mul_f32 v{T1+k}, v{r}, v{vL}")
        a(f"v_max_f32 v{T2+k}, v{r}, v{vZ}")
    gidx_off(a)
    for k in range(n): a(f"v_exp_f32_e64 v{T1+k}, v{T1+k} clamp")
    for k in range(0, n, 2): a(f"v_pk_add_f32 v[{T1+k}:{T1+k+1}], v[{T1+k}:{T1+k+1}], {sEps} op_sel_hi:[1,0]")
    for k in range(0, n, 2): a(f"v_pk_add_f32 v[{T2+k}:{T2+k+1}], v[{T2+k}:{T2+k+1}], v[{T1+k}:{T1+k+1}]")

def gelu_idx(a, accs, css, sidx, ST, T1, T2):
    n = len(accs)
    gidx_on(a, sidx, 4)
    for k, r in enumerate(accs): a(f"v_fma_f32 v{T1+k}, v{css[k]}, v{ST}, v{r}")
    gidx_off(a)
    P = lambda b, k: f"v[{b+k}:{b+k+1}]"
    S01 = f"v[{ST}:{ST+1}]"; S23 = f"v[{ST+2}:{ST+3}]"
    for k in range(0, n, 2): a(f"v_pk_mul_f32 {P(T2,k)}, {P(T1,k)}, {P(T1,k)}")
    for k in range(0, n, 2): a(f"v_pk_fma_f32 {P(T2,k)}, {P(T2,k)}, {S23}, {S23} op_sel:[0,1,0] op_sel_hi:[1,1,0]")
    for k in range(0, n, 2): a(f"v_pk_mul_f32 {P(T2,k)}, {P(T2,k)}, {P(T1,k)}")
    for k in range(n): a(f"v_exp_f32 v{T2+k}, v{T2+k}")
    for k in range(0, n, 2): a(f"v_pk_fma_f32 {P(T2,k)}, {P(T2,k)}, {S01}, {S01} op_sel:[0,1,1] op_sel_hi:[1,1,1]")
    for k in range(n): a(f"v_rcp_f32 v{T2+k}, v{T2+k}")
    for k in range(0, n, 2): a(f"v_pk_mul_f32 {P(T1,k)}, {P(T1,k)}, {P(T2,k)}")

def ln_finalize(a, SUM, SQ, n, R, sA, sB):
    a(f"s_mov_b32 {sA}, {f32(-1.0/640)}")
    a(f"s_mov_b32 {sB}, {f32(1.0/640)}")
    for j in range(n): a(f"v_mul_f32 v{R+4*j}, {sA}, v{SUM+j}")
    for j in range(n): a(f"v_mul_f32 v{R+4*j+1}, {sB}, v{SQ+j}")
    a(f"s_mov_b32 {sA}, {f32(1e-5)}")
    for j in range(n): a(f"v_fma_f32 v{R+4*j+1}, -v{R+4*j}, v{R+4*j}, v{R+4*j+1}")
    for j in range(n): a(f"v_add_f32 v{R+4*j+1}, {sA}, v{R+4*j+1}")
    for j in range(n): a(f"v_rsq_f32 v{R+4*j+2}, v{R+4*j+1}")
    for j in range(n): a(f"v_sqrt_f32 v{R+4*j+1}, v{R+4*j+1}")
    a(f"s_mov_b32 {sA}, {f32(GC1)}")
    a(f"s_mov_b32 {sB}, {f32(GC0)}")
    for j in range(n): a(f"v_mul_f32 v{R+4*j+3}, v{R+4*j+2}, v{R+4*j+2}")
    for j in range(n): a(f"v_mul_f32 v{R+4*j+3}, v{R+4*j+3}, v{R+4*j+2}")
    for j in range(n): a(f"v_mul_f32 v{R+4*j+3}, {sA}, v{R+4*j+3}")
    for j in range(n): a(f"v_mul_f32 v{R+4*j+2}, {sB}, v{R+4*j+2}")

def dot2(acc, x, y):
    if os.environ.get("DOT2C","0")=="1": return f"v_dot2c_f32_bf16 v{acc}, v{x}, v{y}"
    return f"v_dot2_f32_bf16 v{acc}, v{x}, v{y}, v{acc}"
```

```python
from common import *

A_RING = 0
B_RING = 65536
MISC   = 147456
ST_OFF = 0
CS_OFF = 2048
K1_LDS = 163840
NST = 10
ROT = int(os.environ.get('ROT', '1'))
DEPTH = int(os.environ.get('DEPTH', '2'))
KVOFF = [0, 32, 64, 1280, 1312, 96, 128, 1344, 1376, 1408]

def gen_k1(a):
    name = "k1_kernel"
    kernel_head(a, name)
    END = "L_k1_end"
    a(f"s_cmp_ge_u32 s2, 256")
    a(f"s_cbranch_scc1 {END}")
    stamp(a, 0)
    a(f"s_load_dwordx4 s[4:7], s[0:1], {KA_AX}")
    a(f"s_load_dwordx2 s[10:11], s[0:1], {KA_W1}")
    a(f"s_load_dwordx2 s[12:13], s[0:1], {KA_WS}")
    a("""
    v_lshrrev_b32 v1, 6, v0
    v_and_b32 v0, 63, v0
    s_and_b32 s16, s2, 7
    s_lshr_b32 s17, s2, 3
    v_readfirstlane_b32 s22, v1
    s_and_b32 s18, s16, 3
    s_lshr_b32 s19, s16, 2
    s_lshl_b32 s19, s19, 3
    s_and_b32 s20, s17, 7
    s_add_u32 s20, s20, s19
    s_lshr_b32 s21, s17, 3
    s_lshl_b32 s3, s18, 2
    s_add_u32 s3, s3, s21
    s_cmp_lt_u32 s22, 4
    s_cbranch_scc1 L_k1_compute
    """)
    loader(a)
    compute(a)
    a.label(END)
    a("s_endpgm")
    return name

def srds(a, out_only=False):
    a("s_waitcnt lgkmcnt(0)")
    stamp(a, 6)
    srd(a, 32, 12, WS_END)
    if out_only: return
    srd(a, 24, 4, 2621440)
    a(f"""
    s_cmp_eq_u32 s18, 3
    s_cselect_b64 s[6:7], s[10:11], s[6:7]
    s_mov_b32 s30, 2457600
    s_cselect_b32 s30, 819200, s30
    s_mov_b32 s28, s6
    s_mov_b32 s29, s7
    s_mov_b32 s31, {SRD3:#x}
    """)

def loader(a):
    VA = 2
    VB = 6
    T = 11
    a("s_sub_u32 s22, s22, 4")
    a(f"""
    v_lshrrev_b32 v{T}, 3, v0
    v_mul_u32_u24 v{T}, 1280, v{T}
    v_lshrrev_b32 v{T+1}, 4, v0
    v_and_b32 v{T+2}, 7, v0
    v_xor_b32 v{T+1}, v{T+1}, v{T+2}
    v_lshl_add_u32 v{T}, v{T+1}, 4, v{T}
    s_lshl_b32 s36, s20, 7
    s_lshl_b32 s37, s22, 5
    s_add_u32 s36, s36, s37
    s_mul_i32 s36, s36, 1280
    v_add_u32 v{VA}, s36, v{T}
    v_xor_b32 v{T+1}, 64, v{T}
    s_add_u32 s37, s36, {10240-1024}
    v_add_u32 v{VA+1}, s37, v{T+1}
    s_add_u32 s37, s36, {2*10240-2048}
    v_add_u32 v{VA+2}, s37, v{T}
    s_add_u32 s37, s36, {3*10240-3072}
    v_add_u32 v{VA+3}, s37, v{T+1}
    """)
    a(f"""
    s_mul_i32 s23, s3, 160
    s_add_u32 s23, s23, 1280
    s_mul_i32 s16, s21, 320
    s_cmp_lt_u32 s18, 2
    s_cselect_b32 s23, s23, s16
    s_cmp_eq_u32 s18, 3
    s_mov_b32 s15, 3840
    s_cselect_b32 s15, 1280, s15
    s_and_b32 s49, s20, 7
    s_mul_i32 s36, s21, 3
    s_add_u32 s49, s49, s36
    s_cmp_ge_u32 s49, 10
    s_cselect_b32 s36, 10, 0
    s_sub_u32 s49, s49, s36
    s_mul_i32 s49, s49, {ROT}
    s_lshl_b32 s41, s15, 6
    s_lshl_b32 s42, s22, 12
    s_mul_i32 s43, s22, 5120
    s_add_u32 s43, s43, {B_RING}
    s_lshl_b32 s36, s49, 7
    s_mul_i32 s37, s49, s41
    """)
    a(f"""
    v_lshrrev_b32 v{T}, 2, v0
    s_lshl_b32 s44, s22, 4
    v_add_u32 v{T}, s44, v{T}
    v_mul_lo_u32 v{T}, v{T}, s15
    v_lshrrev_b32 v{T+1}, 5, v0
    v_lshlrev_b32 v{T+1}, 1, v{T+1}
    v_and_b32 v{T+2}, 3, v0
    v_xor_b32 v{T+1}, v{T+1}, v{T+2}
    v_and_b32 v{T+2}, 1, v{T+1}
    v_lshrrev_b32 v{T+1}, 1, v{T+1}
    v_lshl_add_u32 v{T}, v{T+2}, 4, v{T}
    v_add_u32 v{T}, s23, v{T}
    s_cmp_lt_u32 s18, 2
    """)
    for j in range(5):
        a(f"s_mov_b32 s44, {64*j}")
        a(f"s_cselect_b32 s44, {KVOFF[2*j]}, s44")
        a(f"s_mov_b32 s45, 32")
        a(f"s_cselect_b32 s45, {(KVOFF[2*j+1]-KVOFF[2*j]) & 0xffffffff:#x}, s45")
        a(f"v_mad_i32_i24 v{VB+j}, v{T+1}, s45, v{T}")
        a(f"v_add_u32 v{VB+j}, s44, v{VB+j}")
    srds(a)
    a("s_mov_b32 s40, 0")

    def issue(fill=()):
        fill = list(fill)
        def f(n):
            for _ in range(n):
                if fill:
                    x = fill.pop(0)
                    if x: a(x)
        a(f"""
        s_lshl_b32 s38, s40, 14
        s_add_u32 s38, s38, s42
        s_mul_i32 s39, s40, 20480
        s_add_u32 s39, s39, s43
        s_mov_b32 m0, s38
        s_add_u32 s40, s40, 1
        """)
        per = (len(fill) + 8) // 9
        nod = 'nodma' in EXP
        for j in range(4):
            if not nod: a(f"buffer_load_dwordx4 v{VA+j}, s[24:27], s36 offen offset:{1024*j} lds")
            f(per)
        a("s_mov_b32 m0, s39")
        a("s_and_b32 s40, s40, 3")
        for j in range(5):
            if not nod: a(f"buffer_load_dwordx4 v{VB+j}, s[28:31], s37 offen lds")
            if j < 4: a("s_add_u32 m0, m0, 1024")
            if j < 4 and not fill: a("s_nop 0")
            f(per)
        f(len(fill))
        a("""
        s_add_u32 s36, s36, 128
        s_add_u32 s37, s37, s41
        s_add_u32 s49, s49, 1
        s_cmp_eq_u32 s49, 10
        s_cselect_b32 s36, 0, s36
        s_cselect_b32 s37, 0, s37
        s_cselect_b32 s49, 0, s49
        """)

    a("s_mov_b32 s44, 0")
    a.label("L_k1_ld_pro")
    issue()
    a(f"s_add_u32 s44, s44, 1\ns_cmp_lt_u32 s44, {DEPTH}\ns_cbranch_scc1 L_k1_ld_pro")
    stamp(a, 1)
    a("s_mov_b32 s44, 0")
    if BSTAMP:
        a("s_mov_b32 s45, 31"); bstamp(a, "s45")
    a.label("L_k1_ld_loop")
    a(f"s_waitcnt vmcnt({9*(DEPTH-1)})")
    a("s_barrier")
    bstamp(a, "s44")
    issue()
    a(f"s_add_u32 s44, s44, 1\ns_cmp_lt_u32 s44, {NST-DEPTH}\ns_cbranch_scc1 L_k1_ld_loop")
    for i in range(DEPTH):
        a(f"s_waitcnt vmcnt({9*(DEPTH-1-i)})\ns_barrier")
        bstamp(a, "s44")
        if BSTAMP: a("s_add_u32 s44, s44, 1")
    if BSTAMP:
        a("s_add_u32 s22, s22, 4"); bstamp_flush(a, 0, "s22"); a("s_sub_u32 s22, s22, 4")
    if STAMP:
        stamp(a, 3)
        a("s_add_u32 s22, s22, 4")
        stamp_flush(a, 0, "s22", 4)
    a("s_endpgm")

def acc(i, t): return 4*(i*5+t)
XA, XB = 80, 96
YA, YB = 116, 132
VA0, VA1, VBP, VBQ = 152, 153, 154, 155
LANE = 255

def reads(SA, SB, ks):
    va = VA0 if ks == 0 else VA1
    ra = [f"ds_read_b128 v[{SA+4*i}:{SA+4*i+3}], v{va} offset:{2048*i}" for i in range(4)]
    rb = []
    for tt in range(5):
        vb = VBP if tt % 2 == 0 else VBQ
        for j in range(2):
            rb.append(f"ds_read_b64_tr_b16 v[{SB+4*tt+2*j}:{SB+4*tt+2*j+1}], v{vb} offset:{ks*10240 + (tt>>1)*1024 + j*256}")
    r = [rb[0], rb[1], ra[0], ra[1], ra[2], ra[3], rb[2], rb[3], rb[4], rb[5], rb[6], rb[7], rb[8], rb[9]]
    if 'noread' in EXP: return []
    return r

def mfmas(SA, SB, swapped):
    m = []
    for tt in range(5):
        for i in range(4):
            d = f"v[{acc(i,tt)}:{acc(i,tt)+3}]"
            xa = f"v[{SA+4*i}:{SA+4*i+3}]"; wb = f"v[{SB+4*tt}:{SB+4*tt+3}]"
            m.append(f"v_mfma_f32_16x16x32_bf16 {d}, {wb}, {xa}, {d}" if swapped else f"v_mfma_f32_16x16x32_bf16 {d}, {xa}, {wb}, {d}")
    if 'nomfma' in EXP: return m[:1]
    return m

SUMR, SQR, CSA, ONESF = 200, 204, 208, 228
SUMA, GRAM = 232, 180
def stat_mfmas(SA):
    L = []
    for i in range(4):
        x = f"v[{SA+4*i}:{SA+4*i+3}]"
        L.append(f"v_mfma_f32_16x16x32_bf16 v[{SUMA+4*i}:{SUMA+4*i+3}], v[{ONESF}:{ONESF+3}], {x}, v[{SUMA+4*i}:{SUMA+4*i+3}]")
        L.append(f"v_mfma_f32_16x16x32_bf16 v[{GRAM+4*i}:{GRAM+4*i+3}], {x}, {x}, v[{GRAM+4*i}:{GRAM+4*i+3}]")
    return L
def cs_mfmas(SB):
    return [f"v_mfma_f32_16x16x32_bf16 v[{CSA+4*tt}:{CSA+4*tt+3}], v[{SB+4*tt}:{SB+4*tt+3}], v[{ONESF}:{ONESF+3}], v[{CSA+4*tt}:{CSA+4*tt+3}]" for tt in range(5)]
def merge(x, y):
    out = []; n = max(len(x), len(y))
    i = j = 0
    while i < len(x) or j < len(y):
        if i < len(x) and (j >= len(y) or i*len(y) <= j*len(x)): out.append(x[i]); i += 1
        else: out.append(y[j]); j += 1
    return out

def mainloop(a, tag, swapped, delta=None):
    a("s_mov_b32 s40, 0")
    a("s_barrier")
    stamp(a, 1)
    for r in reads(XA, XB, 0): a(r)
    a("s_waitcnt lgkmcnt(0)")
    a.label(f"L_k1_main_{tag}")
    adv = ["s_add_u32 s40, s40, 1", "s_and_b32 s41, s40, 3", "s_mov_b32 s42, 16384", "s_mov_b32 s43, 20480",
           "s_cmp_eq_u32 s41, 0",
           f"s_cselect_b32 s42, {-3*16384 & 0xffffffff:#x}, s42", f"s_cselect_b32 s43, {-3*20480 & 0xffffffff:#x}, s43",
           f"v_add_u32 v{VA0}, s42, v{VA0}", f"v_add_u32 v{VA1}, s42, v{VA1}",
           f"v_add_u32 v{VBP}, s43, v{VBP}", f"v_add_u32 v{VBQ}, s43, v{VBQ}",
           f"s_cmp_eq_u32 s40, {NST}"]
    def group(SA, SB, rd, extra, g):
        ms = mfmas(SA, SB, swapped)
        if delta is None:
            interleave2(a, ms, rd + extra); return
        interleave2(a, ms + (stat_mfmas(SA) if delta == g else cs_mfmas(SB)), rd + extra)
    group(XA, XB, reads(YA, YB, 1), adv, 0)
    a("s_waitcnt lgkmcnt(0)")
    a(f"s_cbranch_scc1 L_k1_nobar_{tag}")
    a("s_barrier")
    a.label(f"L_k1_nobar_{tag}")
    group(YA, YB, reads(XA, XB, 0), [], 1)
    a("s_waitcnt lgkmcnt(0)")
    a(f"s_cbranch_scc0 L_k1_main_{tag}")
    stamp(a, 2)

def compute(a):
    a.label("L_k1_compute")
    a(f"v_mov_b32 v{LANE}, v0")
    T = 160
    a(f"""
    s_setprio {os.environ.get('PRIO','0')}
    s_lshr_b32 s36, s22, 1
    s_and_b32 s37, s22, 1
    v_and_b32 v{T}, 15, v{LANE}
    v_lshrrev_b32 v{T+1}, 4, v{LANE}
    v_lshrrev_b32 v{T+2}, 1, v{T}
    v_xor_b32 v{T+2}, v{T+2}, v{T+1}
    v_lshlrev_b32 v{T+2}, 4, v{T+2}
    v_lshl_add_u32 v{T+2}, v{T}, 7, v{T+2}
    s_lshl_b32 s38, s36, 13
    v_add_u32 v{VA0}, s38, v{T+2}
    v_xor_b32 v{VA1}, 64, v{VA0}
    v_lshrrev_b32 v{T+2}, 1, v{T+1}
    v_mul_u32_u24 v{T+2}, 5120, v{T+2}
    v_and_b32 v{T+3}, 1, v{T+1}
    v_lshrrev_b32 v{T+4}, 2, v{T}
    v_lshl_add_u32 v{T+4}, v{T+3}, 3, v{T+4}
    v_lshl_add_u32 v{T+2}, v{T+4}, 6, v{T+2}
    v_and_b32 v{T+4}, 3, v{T}
    v_lshl_add_u32 v{T+2}, v{T+4}, 3, v{T+2}
    v_add_u32 v{T+2}, {B_RING}, v{T+2}
    v_lshl_add_u32 v{T+4}, v{T+3}, 5, v{T+2}
    v_xor_b32 v{T+3}, 1, v{T+3}
    v_lshl_add_u32 v{T+5}, v{T+3}, 5, v{T+2}
    s_cmp_eq_u32 s37, 0
    s_cbranch_scc0 L_k1_c_wn1
    v_mov_b32 v{VBP}, v{T+4}
    v_mov_b32 v{VBQ}, v{T+5}
    s_branch L_k1_c_wn
    """)
    a.label("L_k1_c_wn1")
    a(f"v_add_u32 v{VBP}, 0x800, v{T+5}\nv_add_u32 v{VBQ}, 0xc00, v{T+4}")
    a.label("L_k1_c_wn")
    for r in range(80): a(f"v_mov_b32 v{r}, 0")
    srds(a, out_only=True)
    a("s_cmp_lt_u32 s18, 2")
    a("s_cbranch_scc1 L_k1_kv")
    a("s_cmp_eq_u32 s18, 3\ns_cbranch_scc0 L_k1_q_main")
    for r in list(range(SUMA, SUMA+16)) + list(range(GRAM, GRAM+16)) + list(range(CSA, ONESF)): a(f"v_mov_b32 v{r}, 0")
    for r in range(ONESF, ONESF+4): a(f"v_mov_b32 v{r}, 0x3f803f80")
    a("s_xor_b32 s38, s36, s37\ns_cmp_eq_u32 s38, 0\ns_cbranch_scc0 L_k1_h_main1")
    mainloop(a, "h0", True, 0)
    a("s_branch L_k1_qh_epi")
    a.label("L_k1_h_main1")
    mainloop(a, "h1", True, 1)
    a("s_branch L_k1_qh_epi")
    a.label("L_k1_q_main")
    mainloop(a, "sw", True)
    a.label("L_k1_qh_epi")
    VO, VO2, VST = 156, 157, 158
    a(f"""
    v_lshrrev_b32 v{T+1}, 4, v{LANE}
    v_and_b32 v{T}, 15, v{LANE}
    v_lshlrev_b32 v{T}, 4, v{T}
    v_and_b32 v{T+2}, 1, v{T+1}
    v_lshrrev_b32 v{T+3}, 1, v{T+1}
    v_lshl_add_u32 v{T+4}, v{T+2}, 1, v{T+3}
    v_lshl_add_u32 v{VO}, v{T+4}, 15, v{T}
    v_add_u32 v{T+3}, 8, v{T+3}
    v_lshl_add_u32 v{T+3}, v{T+3}, 15, v{T}
    v_lshl_add_u32 v{VO2}, v{T+2}, 3, v{T+3}
    s_mul_i32 s38, s21, 20
    s_mul_i32 s39, s37, 10
    s_add_u32 s38, s38, s39
    s_lshl_b32 s38, s38, 15
    s_lshl_b32 s39, s20, 7
    s_lshl_b32 s42, s36, 6
    s_add_u32 s39, s39, s42
    s_lshl_b32 s39, s39, 4
    s_add_u32 s38, s38, s39
    s_cmp_eq_u32 s18, 3
    s_cselect_b32 s39, {WS_H}, {WS_PQ}
    s_add_u32 s38, s38, s39
    v_add_u32 v{VO}, s38, v{VO}
    v_add_u32 v{VO2}, s38, v{VO2}
    s_mov_b32 s43, {4*CSTR}
    s_mov_b32 s46, 0
    s_mov_b32 s47, 0
    s_cmp_eq_u32 s18, 3
    s_cbranch_scc1 L_k1_epi_h
    """)
    T1, T2 = 80, 100
    PK = 120
    def pack_store(R):
        for tt in range(5):
            a(f"v_cvt_pk_bf16_f32 v{PK+2*tt}, v{R+4*tt}, v{R+4*tt+1}")
            a(f"v_cvt_pk_bf16_f32 v{PK+2*tt+1}, v{R+4*tt+2}, v{R+4*tt+3}")
        for pp in range(2):
            P = PK + 4*pp
            a(f"v_permlane16_swap_b32 v{P}, v{P+2}")
            a(f"v_permlane16_swap_b32 v{P+1}, v{P+3}")
        a(f"buffer_store_dwordx2 v[{PK+8}:{PK+9}], v{VO2}, s[32:35], s47 offen{STSC}")
        a(f"buffer_store_dwordx4 v[{PK}:{PK+3}], v{VO}, s[32:35], s47 offen{STSC}")
        a(f"s_add_u32 s48, s47, s43")
        a(f"buffer_store_dwordx4 v[{PK+4}:{PK+7}], v{VO}, s[32:35], s48 offen{STSC}")
        a("s_add_u32 s46, s46, 20\ns_add_u32 s47, s47, 256\ns_cmp_lt_u32 s46, 80")
    VL, VZ = 130, 131
    a(f"v_mov_b32 v{VL}, {f32(LOG2E)}\nv_mov_b32 v{VZ}, 0")
    a(f"s_mov_b32 s44, {f32(1e-6)}")
    a.label("L_k1_q_loop")
    phi_idx(a, list(range(20)), "s46", T1, T2, VL, VZ, "s[44:45]")
    pack_store(T2)
    a("s_cbranch_scc1 L_k1_q_loop")
    stamp(a, 3); stamp_flush(a, 0, "s22", 4)
    a("s_endpgm")
    a.label("L_k1_epi_h")
    STA, CSR = 132, CSA
    EX = 0
    a(f"""
    v_and_b32 v{T+6}, 3, v{LANE}
    v_bfe_u32 v{T+7}, v{LANE}, 2, 2
    v_lshrrev_b32 v{T+8}, 4, v{LANE}
    v_cmp_eq_u32 s[50:51], 1, v{T+6}
    v_cmp_eq_u32 s[52:53], 2, v{T+6}
    v_cmp_eq_u32 s[54:55], 3, v{T+6}
    v_cmp_eq_u32 s[56:57], v{T+7}, v{T+8}
    """)
    for i in range(4): a(f"v_cndmask_b32 v{SQR+i}, v{GRAM+4*i}, v{GRAM+4*i+1}, s[50:51]")
    for i in range(4): a(f"v_cndmask_b32 v{SQR+i}, v{SQR+i}, v{GRAM+4*i+2}, s[52:53]")
    for i in range(4): a(f"v_cndmask_b32 v{SQR+i}, v{SQR+i}, v{GRAM+4*i+3}, s[54:55]")
    for i in range(4): a(f"v_cndmask_b32 v{SQR+i}, 0, v{SQR+i}, s[56:57]")
    for i in range(4): a(f"v_mov_b32 v{SUMR+i}, v{SUMA+4*i}")
    lane_group_sum(a, list(range(SQR, SQR+4)), T1)
    a(f"""
    v_and_b32 v{T+2}, 15, v{LANE}
    v_lshlrev_b32 v{T+2}, 3, v{T+2}
    s_lshl_b32 s42, s22, 9
    v_add_u32 v{T+3}, s42, v{T+2}
    s_xor_b32 s42, s42, 512
    v_add_u32 v{T+2}, s42, v{T+2}
    v_lshrrev_b32 v{T+4}, 4, v{LANE}
    v_lshlrev_b32 v{T+4}, 4, v{T+4}
    s_mul_i32 s42, s22, 320
    v_add_u32 v{T+5}, s42, v{T+4}
    s_xor_b32 s42, s22, 2
    s_mul_i32 s42, s42, 320
    v_add_u32 v{T+4}, s42, v{T+4}
    s_barrier
    """)
    for i in range(4):
        a(f"v_mov_b32 v{T1+2*i}, v{SUMR+i}\nv_mov_b32 v{T1+2*i+1}, v{SQR+i}")
        a(f"ds_write_b64 v{T+3}, v[{T1+2*i}:{T1+2*i+1}] offset:{128*i}")
    for tt in range(5):
        a(f"ds_write_b128 v{T+5}, v[{CSA+4*tt}:{CSA+4*tt+3}] offset:{4096 + 64*tt}")
    a("s_waitcnt lgkmcnt(0)\ns_barrier")
    for i in range(4): a(f"ds_read_b64 v[{T1+2*i}:{T1+2*i+1}], v{T+2} offset:{128*i}")
    for tt in range(5): a(f"ds_read_b128 v[{T2+4*tt}:{T2+4*tt+3}], v{T+4} offset:{4096 + 64*tt}")
    a("s_waitcnt lgkmcnt(5)")
    for i in range(4):
        a(f"v_add_f32 v{SUMR+i}, v{SUMR+i}, v{T1+2*i}\nv_add_f32 v{SQR+i}, v{SQR+i}, v{T1+2*i+1}")
    ln_finalize(a, SUMR, SQR, 4, STA, "s44", "s45")
    a("s_waitcnt lgkmcnt(0)")
    for k in range(20): a(f"v_add_f32 v{CSA+k}, v{CSA+k}, v{T2+k}")
    stamp(a, 5)
    ST = 148
    a("s_mov_b32 s49, 0")
    a.label("L_k1_h_loop")
    gidx_on(a, "s49", 1)
    for k in range(4): a(f"v_mov_b32 v{ST+k}, v{STA+k}")
    gidx_off(a)
    a("s_add_u32 s49, s49, 4")
    gelu_idx(a, list(range(20)), list(range(CSR, CSR+20)), "s46", ST, T1, T2)
    pack_store(T1)
    a("s_cbranch_scc1 L_k1_h_loop")
    stamp(a, 3); stamp_flush(a, 0, "s22", 4)
    a("s_endpgm")

    a.label("L_k1_kv")
    mainloop(a, "nm", False)
    kv_epilogue(a)

def kv_epilogue(a):
    T = 160
    T1, T2 = 80, 96
    W = 112
    FR = 144
    VL, VZ = 152, 153
    ONES_OFF = 40960
    a(f"v_mov_b32 v{VL}, {f32(LOG2E)}\nv_mov_b32 v{VZ}, 0")
    a(f"s_mov_b32 s44, {f32(1e-6)}")
    a(f"""
    s_barrier
    v_lshlrev_b32 v{T}, 4, v{LANE}
    s_mul_i32 s38, s22, 10240
    v_add_u32 v{T+1}, s38, v{T}
    v_mov_b32 v{T+4}, 0x3f803f80
    v_mov_b32 v{T+5}, 0x3f803f80
    v_mov_b32 v{T+6}, 0x3f803f80
    v_mov_b32 v{T+7}, 0x3f803f80
    ds_write_b128 v{T}, v[{T+4}:{T+7}] offset:{ONES_OFF}
    s_mov_b32 s46, 0
    """)
    def pack(src0, src1, tt):
        f = FR + 4*(tt & 1)
        for h, r in enumerate((src0, src1)):
            a(f"v_cvt_pk_bf16_f32 v{f+2*h}, v{r}, v{r+1}")
            a(f"v_cvt_pk_bf16_f32 v{f+2*h+1}, v{r+2}, v{r+3}")
        a(f"ds_write_b128 v{T+1}, v[{f}:{f+3}] offset:{2048*tt}")
    a.label("L_k1_kv_pack")
    accs = [20*h + 4*tt + k for tt in range(2) for h in range(2) for k in range(4)]
    phi_idx(a, accs, "s46", T1, T2, VL, VZ, "s[44:45]")
    pack(T2, T2+4, 0); pack(T2+8, T2+12, 1)
    a("s_cmp_eq_u32 s37, 1\ns_cbranch_scc1 L_k1_kv_raw2")
    accs = [20*h + 8 + k for h in range(2) for k in range(4)]
    phi_idx(a, accs, "s46", T1, W, VL, VZ, "s[44:45]")
    a("s_branch L_k1_kv_t2")
    a.label("L_k1_kv_raw2")
    gidx_on(a, "s46", 1)
    for h in range(2):
        for k in range(4): a(f"v_mov_b32 v{W+4*h+k}, v{20*h+8+k}")
    gidx_off(a)
    a.label("L_k1_kv_t2")
    gidx_on(a, "s46", 1)
    for tt in (3, 4):
        for h in range(2):
            for k in range(4): a(f"v_mov_b32 v{W+8*(tt-2)+4*h+k}, v{20*h+4*tt+k}")
    gidx_off(a)
    for tt in (2, 3, 4): pack(W+8*(tt-2), W+8*(tt-2)+4, tt)
    a(f"v_add_u32 v{T+1}, 0x400, v{T+1}")
    a("s_add_u32 s46, s46, 40\ns_cmp_lt_u32 s46, 80\ns_cbranch_scc1 L_k1_kv_pack")
    jobs = [[(0,0),(0,1),(0,7),(4,3),(4,4)],
            [(1,0),(1,1),(1,2),(1,7),(4,7)],
            [(2,1),(2,2),(2,3),(2,7),None],
            [(3,2),(3,3),(3,4),(3,7),None]]
    a(f"""
    s_lshl_b32 s48, s20, 5
    s_lshl_b32 s49, s3, 2
    s_add_u32 s48, s48, s49
    s_mul_i32 s48, s48, 1664
    s_add_u32 s48, s48, {WS_KVS}
    s_mul_i32 s49, s20, 2560
    s_mul_i32 s50, s3, 320
    s_add_u32 s49, s49, s50
    s_add_u32 s49, s49, {WS_ZS}
    v_lshrrev_b32 v{T+8}, 4, v{LANE}
    v_lshlrev_b32 v{T+8}, 2, v{T+8}
    v_and_b32 v{T+9}, 15, v{LANE}
    v_mov_b32 v{T+10}, 0x7ffffff0
    s_waitcnt lgkmcnt(0)
    s_barrier
    """)
    stamp(a, 5)
    G4, L15, OOB = T+8, T+9, T+10
    FA, FA2, FB, D = 0, 16, 32, 100
    def aoff(t): return 2048*t + (10240 - 3*2048 if t >= 3 else 0)
    def boff(t): return 2048*t + (10240 if t >= 2 else 3*2048)
    KS = [0, 1024, 20480, 21504]
    def head(x): return x // 20
    for w in range(4):
        if w < 3:
            a(f"s_cmp_eq_u32 s22, {w}\ns_cbranch_scc0 L_k1_kvj_{w+1}")
        js = [j for j in jobs[w] if j]
        dts = list(dict.fromkeys(j[0] for j in js)); ets = list(dict.fromkeys(j[1] for j in js if j[1] != 7))
        areg = {t: (FA if n == 0 else FA2) for n, t in enumerate(dts)}
        breg = {t: FB + 16*n for n, t in enumerate(ets)}
        ONE = 96
        rd = []
        rd.append(f"ds_read_b128 v[{ONE}:{ONE+3}], v{T} offset:{ONES_OFF}")
        for ks in range(4):
            for t in dts: rd.append(f"ds_read_b128 v[{areg[t]+4*ks}:{areg[t]+4*ks+3}], v{T} offset:{aoff(t)+KS[ks]}")
            for t in ets: rd.append(f"ds_read_b128 v[{breg[t]+4*ks}:{breg[t]+4*ks+3}], v{T} offset:{boff(t)+KS[ks]}")
        per = len(dts) + len(ets)
        for x in rd[:1+2*per]: a(x)
        AD = 120
        for n, (da, eb) in enumerate(js):
            for r in range(4):
                if eb == 7:
                    pass
        DT = 140
        for k, da in enumerate(dts):
            for r in range(4):
                a(f"v_add_u32 v{T+11}, {16*da + r}, v{G4}")
                a(f"v_mul_u32_u24 v{DT+8*k+4+r}, 0xccd, v{T+11}")
                a(f"v_lshrrev_b32 v{DT+8*k+4+r}, 16, v{DT+8*k+4+r}")
                a(f"v_mul_u32_u24 v{T+11}, 0x50, v{T+11}")
                a(f"v_lshlrev_b32 v{T+12}, 4, v{DT+8*k+4+r}")
                a(f"v_sub_u32 v{DT+8*k+r}, v{T+11}, v{T+12}")
        for x in rd[1+2*per:]: a(x)
        for n, (da, eb) in enumerate(js):
            k = dts.index(da)
            if eb == 7:
                a(f"v_cmp_eq_u32 vcc, 0, v{L15}")
                a(f"v_lshl_add_u32 v{T+11}, v{G4}, 2, s49")
                a(f"v_add_u32 v{T+11}, {64*da}, v{T+11}")
                a(f"v_cndmask_b32 v{T+11}, v{OOB}, v{T+11}, vcc")
                for r in range(4): a(f"v_add_u32 v{AD+4*n+r}, {4*r}, v{T+11}")
            else:
                a(f"v_add_u32 v{T+11}, {16*eb}, v{L15}")
                a(f"v_mul_u32_u24 v{T+12}, 0xccd, v{T+11}")
                a(f"v_lshrrev_b32 v{T+12}, 16, v{T+12}")
                a(f"v_lshl_add_u32 v{T+11}, v{T+11}, 2, s48")
                for r in range(4):
                    a(f"v_cmp_eq_u32 s[{50+2*r}:{51+2*r}], v{DT+8*k+4+r}, v{T+12}")
                    a(f"v_add_u32 v{AD+4*n+r}, v{T+11}, v{DT+8*k+r}")
                for r in range(4):
                    a(f"v_cndmask_b32 v{AD+4*n+r}, v{OOB}, v{AD+4*n+r}, s[{50+2*r}:{51+2*r}]")
        a("s_waitcnt lgkmcnt(0)")
        for ks in range(4):
            for n, (da, eb) in enumerate(js):
                b = ONE if eb == 7 else breg[eb] + 4*ks
                c = "0" if ks == 0 else f"v[{D+4*n}:{D+4*n+3}]"
                a(f"v_mfma_f32_16x16x32_bf16 v[{D+4*n}:{D+4*n+3}], v[{areg[da]+4*ks}:{areg[da]+4*ks+3}], v[{b}:{b+3}], {c}")
        a("s_nop 4")
        for n in range(len(js)):
            for r in range(4):
                if n == len(js)-1 and r == 0: a("s_nop 3")
                a(f"buffer_store_dword v{D+4*n+r}, v{AD+4*n+r}, s[32:35], 0 offen{STSC}")
        stamp(a, 3); stamp_flush(a, 0, "s22", 4)
        a("s_endpgm")
        if w < 3: a.label(f"L_k1_kvj_{w+1}")
```

```python
from common import *

SLOT = 20480
NSLOT = int(os.environ.get("NSLOT24", "4"))
RES = NSLOT * SLOT
ROT = int(os.environ.get('ROT', '1'))
K24_LDS = 163840
XA, XB = 24, 36
YA, YB = 44, 56
VA, VB0, VB1 = 64, 65, 66
LANE = 67
def acc(i, tt): return 4*(i*2+tt)

def reads(SA, SB, ks):
    ra = [f"ds_read_b128 v[{SA+4*i}:{SA+4*i+3}], v{VA} offset:{ks*6144 + 256*i}" for i in range(3)]
    rb = [f"ds_read_b64_tr_b16 v[{SB+4*tt+2*j}:{SB+4*tt+2*j+1}], v{VB0+tt} offset:{ks*4096 + j*512}" for tt in range(2) for j in range(2)]
    return [rb[0], rb[1], ra[0], rb[2], rb[3], ra[1], ra[2]]
def mfmas(SA, SB):
    return [f"v_mfma_f32_16x16x32_bf16 v[{acc(i,tt)}:{acc(i,tt)+3}], v[{SB+4*tt}:{SB+4*tt+3}], v[{SA+4*i}:{SA+4*i+3}], v[{acc(i,tt)}:{acc(i,tt)+3}]"
            for i in range(3) for tt in range(2)]
def interleave(a, ms, rs):
    k = 0
    for m in ms:
        a(m)
        for _ in range(2):
            if k < len(rs): a(rs[k]); k += 1

def gemm_wg(a, kn, NS, early):
    a.label(f"L_{kn}_compute")
    T = 70
    a(f"""
    v_mov_b32 v{LANE}, v0
    s_lshr_b32 s36, s22, 1
    s_and_b32 s37, s22, 1
    v_and_b32 v{T}, 15, v0
    v_lshrrev_b32 v{T+1}, 4, v0
    v_mul_u32_u24 v{T+2}, 1536, v{T+1}
    v_lshl_add_u32 v{T+2}, v{T}, 4, v{T+2}
    s_mul_i32 s38, s36, 768
    v_add_u32 v{VA}, s38, v{T+2}
    v_lshrrev_b32 v{T+2}, 2, v{T}
    v_lshlrev_b32 v{T+3}, 3, v{T+1}
    v_add_u32 v{T+3}, v{T+3}, v{T+2}
    v_lshlrev_b32 v{T+3}, 7, v{T+3}
    v_and_b32 v{T+4}, 3, v{T}
    v_lshl_add_u32 v{T+3}, v{T+4}, 3, v{T+3}
    v_add_u32 v{T+3}, 12288, v{T+3}
    v_lshrrev_b32 v{T+2}, 1, v{T+2}
    v_and_b32 v{T+4}, 1, v{T+1}
    v_lshlrev_b32 v{T+4}, 1, v{T+4}
    s_lshl_b32 s38, s37, 1
    v_xor_b32 v{T+4}, s38, v{T+4}
    v_add_u32 v{T+5}, v{T+4}, v{T+2}
    v_lshl_add_u32 v{VB0}, v{T+5}, 5, v{T+3}
    v_xor_b32 v{T+2}, 1, v{T+2}
    v_add_u32 v{T+5}, v{T+4}, v{T+2}
    v_lshl_add_u32 v{VB1}, v{T+5}, 5, v{T+3}
    """)
    for r in range(24): a(f"v_mov_b32 v{r}, 0")
    early()
    a("s_mov_b32 s40, 0\ns_mov_b32 s41, 0")
    a("s_barrier")
    stamp(a, 1)
    for r in reads(XA, XB, 0): a(r)
    a("s_waitcnt lgkmcnt(0)")
    a.label(f"L_{kn}_main")
    adv = ["s_add_u32 s40, s40, 1", "s_add_u32 s41, s41, 1", f"s_mov_b32 s42, {SLOT}", f"s_cmp_eq_u32 s41, {NSLOT}",
           f"s_cselect_b32 s42, {(-(NSLOT-1)*SLOT) & 0xffffffff:#x}, s42", "s_cselect_b32 s41, 0, s41",
           f"v_add_u32 v{VA}, s42, v{VA}", f"v_add_u32 v{VB0}, s42, v{VB0}", f"v_add_u32 v{VB1}, s42, v{VB1}",
           f"s_cmp_eq_u32 s40, {NS}"]
    fill = reads(YA, YB, 1) + adv
    ms = mfmas(XA, XB); k = 0
    for n, m in enumerate(ms):
        a(m)
        for _ in range(3):
            if k < len(fill): a(fill[k]); k += 1
    a("s_waitcnt lgkmcnt(0)")
    a(f"s_cbranch_scc1 L_{kn}_nobar")
    a("s_barrier")
    a.label(f"L_{kn}_nobar")
    interleave(a, mfmas(YA, YB), reads(XA, XB, 0))
    a("s_waitcnt lgkmcnt(0)")
    a(f"s_cbranch_scc0 L_{kn}_main")
    stamp(a, 2)
    a("s_barrier")

def loader(a, kn, NS, shift, nres, res_issue, pre):
    T = 20
    ROW, CB, VOF, VB = 2, 5, 8, 11
    a("s_sub_u32 s22, s22, 4")
    a(f"""
    s_mul_i32 s36, s20, 96
    s_lshl_b32 s37, s22, 16
    v_add_u32 v{ROW}, s36, v0
    v_mov_b32 v{CB}, s37
    v_cmp_gt_u32 vcc, 32, v0
    v_add_u32 v{T}, 64, v0
    v_subrev_u32 v{T+1}, 32, v0
    v_cndmask_b32 v{T}, v{T+1}, v{T}, vcc
    v_add_u32 v{ROW+1}, s36, v{T}
    v_mov_b32 v{T}, s37
    v_add_u32 v{T+1}, {CSTR}, v{T}
    v_cndmask_b32 v{CB+1}, v{T+1}, v{T}, vcc
    v_add_u32 v{T}, 32, v0
    v_add_u32 v{ROW+2}, s36, v{T}
    v_mov_b32 v{CB+2}, v{T+1}
    """)
    a(f"""
    v_lshrrev_b32 v{T}, 3, v0
    s_lshl_b32 s37, s22, 4
    v_add_u32 v{T}, s37, v{T}
    v_mul_u32_u24 v{T}, 1280, v{T}
    s_lshl_b32 s37, s21, 7
    v_add_u32 v{T}, s37, v{T}
    v_bfe_u32 v{T+1}, v0, 4, 1
    v_lshlrev_b32 v{T+1}, 1, v{T+1}
    v_and_b32 v{T+2}, 7, v0
    v_xor_b32 v{T+1}, v{T+1}, v{T+2}
    v_lshl_add_u32 v{VB}, v{T+1}, 4, v{T}
    v_xor_b32 v{T+1}, 4, v{T+1}
    v_lshl_add_u32 v{VB+1}, v{T+1}, 4, v{T}
    v_add_u32 v{VB+1}, {8*1280}, v{VB+1}
    """)
    a(f"""
    s_mul_i32 s41, s49, {ROT}
    s_lshl_b32 s36, s41, 18
    s_mul_i32 s37, s41, {64*1280}
    s_mov_b32 s40, 0
    s_mul_i32 s42, s22, 3072
    s_lshl_b32 s43, s22, 11
    s_add_u32 s43, s43, 12288
    """)
    if not shift:
        for j in range(3):
            a(f"v_lshl_add_u32 v{VOF+j}, v{ROW+j}, 4, v{CB+j}")
    def issue():
        a(f"s_mul_i32 s38, s40, {SLOT}")
        if shift:
            a(f"""
            s_lshl_b32 s44, s41, 3
            s_lshl_b32 s45, s22, 1
            s_add_u32 s44, s44, s45
            s_cmp_lt_u32 s44, 20
            s_cselect_b32 s45, 1, -1
            s_cmp_lt_u32 s44, 40
            s_cselect_b32 s45, s45, 2
            s_cmp_lt_u32 s44, 60
            s_cselect_b32 s45, s45, -2
            """)
            for j in range(3):
                a(f"""
                v_subrev_u32 v{T}, s45, v{ROW+j}
                v_cmp_gt_u32 vcc, 0x800, v{T}
                v_lshl_add_u32 v{T}, v{T}, 4, v{CB+j}
                v_mov_b32 v{T+1}, 0x80000000
                v_cndmask_b32 v{VOF+j}, v{T+1}, v{T}, vcc
                """)
        a("s_add_u32 s39, s38, s42")
        a("s_mov_b32 m0, s39")
        a("s_add_u32 s38, s38, s43")
        for j in range(3):
            a(f"buffer_load_dwordx4 v{VOF+j}, s[24:27], s36 offen lds")
            if j < 2: a("s_add_u32 m0, m0, 1024\ns_nop 0")
        a("s_mov_b32 m0, s38")
        a(f"s_add_u32 s36, s36, {8*CSTR}")
        a(f"buffer_load_dwordx4 v{VB}, s[28:31], s37 offen lds")
        a("s_add_u32 m0, m0, 1024")
        a("s_add_u32 s41, s41, 1")
        a(f"buffer_load_dwordx4 v{VB+1}, s[28:31], s37 offen lds")
        a(f"s_add_u32 s37, s37, {64*1280}")
        a(f"s_add_u32 s40, s40, 1\ns_cmp_eq_u32 s40, {NSLOT}\ns_cselect_b32 s40, 0, s40")
        a(f"s_cmp_eq_u32 s41, {NS}\ns_cselect_b32 s36, 0, s36\ns_cselect_b32 s37, 0, s37\ns_cselect_b32 s41, 0, s41")
    D = NSLOT - 1
    pre()
    a("s_mov_b32 s46, 0")
    a.label(f"L_{kn}_ld_pro")
    issue()
    a(f"s_add_u32 s46, s46, 1\ns_cmp_lt_u32 s46, {D}\ns_cbranch_scc1 L_{kn}_ld_pro")
    stamp(a, 1)
    a("s_mov_b32 s46, 0")
    a.label(f"L_{kn}_ld_loop")
    a(f"s_waitcnt vmcnt({5*(D-1)})")
    a("s_barrier")
    issue()
    a(f"s_add_u32 s46, s46, 1\ns_cmp_lt_u32 s46, {NS-D}\ns_cbranch_scc1 L_{kn}_ld_loop")
    res_issue()
    for i in range(NS-D, NS):
        a(f"s_waitcnt vmcnt({5*(NS-1-i)+nres})\ns_barrier")
    a("s_waitcnt vmcnt(0)\ns_barrier")
    if STAMP:
        stamp(a, 2)
        a("s_add_u32 s22, s22, 4")
        stamp_flush(a, 1 if kn == "k2" else 3, "s22", 4)
    a("s_endpgm")

def cm_store_addr(a, VO, base_s, T):
    a(f"""
    v_lshrrev_b32 v{T+1}, 4, v{LANE}
    v_and_b32 v{T}, 15, v{LANE}
    v_and_b32 v{T+2}, 1, v{T+1}
    v_lshrrev_b32 v{T+3}, 1, v{T+1}
    v_lshl_add_u32 v{T+3}, v{T+2}, 1, v{T+3}
    s_lshl_b32 s38, s21, 3
    s_lshl_b32 s39, s37, 2
    s_add_u32 s38, s38, s39
    v_add_u32 v{T+3}, s38, v{T+3}
    v_lshlrev_b32 v{T+3}, 15, v{T+3}
    v_add_u32 v{T+3}, {base_s}, v{T+3}
    s_mul_i32 s38, s20, 96
    s_mul_i32 s39, s36, 48
    s_add_u32 s38, s38, s39
    v_add_u32 v{T}, s38, v{T}
    """)
    for i in range(3):
        a(f"""
        v_add_u32 v{T+4}, {16*i}, v{T}
        v_cmp_gt_u32 vcc, 0x800, v{T+4}
        v_lshl_add_u32 v{T+4}, v{T+4}, 4, v{T+3}
        v_mov_b32 v{T+5}, 0x80000000
        v_cndmask_b32 v{VO+i}, v{T+5}, v{T+4}, vcc
        """)

def gen_k2(a):
    name = "k2_kernel"; kn = "k2"
    kernel_head(a, name)
    a("s_cmp_ge_u32 s2, 256\ns_cbranch_scc1 L_k2_end")
    stamp(a, 0)
    a(f"s_load_dwordx2 s[4:5], s[0:1], {KA_W2}")
    a(f"s_load_dwordx2 s[6:7], s[0:1], {KA_AX}")
    a(f"s_load_dwordx2 s[8:9], s[0:1], {KA_WO}")
    a(f"s_load_dwordx2 s[12:13], s[0:1], {KA_WS}")
    a("""
    v_lshrrev_b32 v1, 6, v0
    v_and_b32 v0, 63, v0
    s_and_b32 s16, s2, 7
    s_lshr_b32 s17, s2, 3
    v_readfirstlane_b32 s22, v1
    s_cmp_ge_u32 s17, 28
    s_cbranch_scc1 L_k2_side
    s_mul_i32 s19, s16, 28
    s_add_u32 s19, s19, s17
    s_cmp_ge_u32 s19, 220
    s_cbranch_scc1 L_k2_end
    s_mul_i32 s20, s19, 6554
    s_lshr_b32 s20, s20, 16
    s_mul_i32 s21, s20, 10
    s_sub_u32 s21, s19, s21
    s_cmp_lt_u32 s22, 4
    s_cbranch_scc1 L_k2_compute
    """)
    a("""
    s_mul_i32 s49, s20, 21846
    s_lshr_b32 s49, s49, 16
    s_mul_i32 s49, s49, 3
    s_sub_u32 s49, s20, s49
    s_mul_i32 s49, s49, 3
    s_add_u32 s49, s49, s21
    s_cmp_ge_u32 s49, 10
    s_cselect_b32 s44, 10, 0
    s_sub_u32 s49, s49, s44
    """)
    def pre():
        a("s_waitcnt lgkmcnt(0)")
        srd(a, 32, 12, WS_END)
        srd(a, 24, 12, CM, WS_H)
        srd(a, 28, 4, 819200)
        srd(a, 48, 6, CM)
    def res_issue():
        T = 20
        a(f"""
        v_lshrrev_b32 v{T}, 3, v0
        s_mul_i32 s44, s20, 96
        s_mul_i32 s45, s22, 24
        s_add_u32 s44, s44, s45
        v_add_u32 v{T}, s44, v{T}
        v_mul_u32_u24 v{T}, 1280, v{T}
        s_lshl_b32 s44, s21, 7
        v_add_u32 v{T}, s44, v{T}
        s_mul_i32 s44, s22, 3072
        s_add_u32 s44, s44, {RES}
        """)
        for j in range(3):
            a(f"""
            s_mul_i32 s45, s22, 12
            s_add_u32 s45, s45, {4*j}
            v_lshrrev_b32 v{T+1}, 4, v0
            v_add_u32 v{T+1}, s45, v{T+1}
            v_and_b32 v{T+1}, 7, v{T+1}
            v_and_b32 v{T+2}, 7, v0
            v_xor_b32 v{T+1}, v{T+1}, v{T+2}
            v_lshl_add_u32 v{T+3+j}, v{T+1}, 4, v{T}
            v_add_u32 v{T+3+j}, {j*8*1280}, v{T+3+j}
            s_add_u32 m0, s44, {1024*j}
            s_nop 0
            buffer_load_dwordx4 v{T+3+j}, s[48:51], 0 offen lds
            """)
    loader(a, kn, 10, True, 3, res_issue, pre)
    T = 70; VO = 96; RX = 84; PK = 100; VR = 112; VS = 114; VX = 116; ONES = 117; SS = 118
    def early():
        a(f"""
        v_and_b32 v{T}, 15, v{LANE}
        v_lshrrev_b32 v{T+1}, 4, v{LANE}
        s_mul_i32 s38, s36, 48
        v_add_u32 v{T+2}, s38, v{T}
        v_lshrrev_b32 v{T+3}, 1, v{T+2}
        v_and_b32 v{T+3}, 7, v{T+3}
        v_lshrrev_b32 v{T+4}, 1, v{T+1}
        s_lshl_b32 s38, s37, 2
        v_add_u32 v{T+4}, s38, v{T+4}
        v_xor_b32 v{T+4}, v{T+4}, v{T+3}
        v_lshlrev_b32 v{T+4}, 4, v{T+4}
        v_and_b32 v{T+5}, 1, v{T+1}
        v_lshl_add_u32 v{T+4}, v{T+5}, 3, v{T+4}
        v_lshl_add_u32 v{T+4}, v{T+2}, 7, v{T+4}
        v_add_u32 v{VR}, {RES}, v{T+4}
        v_xor_b32 v{VR+1}, 32, v{VR}
        v_lshlrev_b32 v{VX}, 3, v{T}
        s_mul_i32 s38, s22, 384
        v_add_u32 v{VX}, s38, v{VX}
        s_mul_i32 s38, s20, 96
        s_mul_i32 s39, s36, 48
        s_add_u32 s38, s38, s39
        v_add_u32 v{T+2}, s38, v{T}
        s_lshl_b32 s38, s21, 14
        s_add_u32 s38, s38, {WS_XST}
        v_lshl_add_u32 v{VS}, v{T+2}, 3, s38
        v_mov_b32 v{ONES}, 0x3f803f80
        """)
        a(f"s_mov_b32 s44, {WS_X1}")
        cm_store_addr(a, VO, "s44", T+6)
        a("s_waitcnt lgkmcnt(0)")
        srd(a, 32, 12, WS_END)
    gemm_wg(a, kn, 10, early)
    for i in range(3):
        for tt in range(2):
            a(f"ds_read_b64 v[{RX+2*(2*i+tt)}:{RX+2*(2*i+tt)+1}], v{VR+tt} offset:{2048*i}")
    for k in range(6): a(f"v_mov_b32 v{SS+k}, 0")
    a("s_waitcnt lgkmcnt(0)")
    for i in range(3):
        P = PK + 4*(i & 1)
        for tt in range(2):
            r = acc(i, tt); x = RX + 2*(2*i+tt); t = 108
            a(f"""
            v_lshlrev_b32 v{t}, 16, v{x}
            v_and_b32 v{t+1}, 0xffff0000, v{x}
            v_lshlrev_b32 v{t+2}, 16, v{x+1}
            v_and_b32 v{t+3}, 0xffff0000, v{x+1}
            v_pk_add_f32 v[{r}:{r+1}], v[{r}:{r+1}], v[{t}:{t+1}]
            v_pk_add_f32 v[{r+2}:{r+3}], v[{r+2}:{r+3}], v[{t+2}:{t+3}]
            v_cvt_pk_bf16_f32 v{P+2*tt}, v{r}, v{r+1}
            v_cvt_pk_bf16_f32 v{P+2*tt+1}, v{r+2}, v{r+3}
            """)
        for k in range(4):
            a(f"v_dot2_f32_bf16 v{SS+2*i}, v{P+k}, v{ONES}, v{SS+2*i}")
            a(f"v_dot2_f32_bf16 v{SS+2*i+1}, v{P+k}, v{P+k}, v{SS+2*i+1}")
        a("s_nop 1")
        a(f"v_permlane16_swap_b32 v{P}, v{P+2}")
        a(f"v_permlane16_swap_b32 v{P+1}, v{P+3}")
        a(f"buffer_store_dwordx4 v[{P}:{P+3}], v{VO+i}, s[32:35], 0 offen{STSC}")
    a("s_nop 1")
    lane_group_sum(a, list(range(SS, SS+6)), 84)
    for i in range(3): a(f"ds_write_b64 v{VX}, v[{SS+2*i}:{SS+2*i+1}] offset:{128*i}")
    a(f"v_xor_b32 v{T}, 0, v{VX}")
    a(f"""
    s_waitcnt lgkmcnt(0)
    s_barrier
    s_cmp_eq_u32 s37, 1
    s_cbranch_scc1 L_k2_nostat
    """)
    for i in range(3): a(f"ds_read_b64 v[{84+2*i}:{85+2*i}], v{VX} offset:{384 + 128*i}")
    a(f"""
    v_and_b32 v{T}, 15, v{LANE}
    s_mul_i32 s38, s20, 96
    s_mul_i32 s39, s36, 48
    s_add_u32 s38, s38, s39
    v_add_u32 v{T}, s38, v{T}
    v_cmp_gt_u32 s[50:51], 16, v{LANE}
    v_mov_b32 v{T+2}, 0x80000000
    s_waitcnt lgkmcnt(0)
    """)
    for i in range(3):
        a(f"""
        v_add_u32 v{T+1}, {16*i}, v{T}
        v_cmp_gt_u32 vcc, 0x800, v{T+1}
        v_pk_add_f32 v[{SS+2*i}:{SS+2*i+1}], v[{SS+2*i}:{SS+2*i+1}], v[{84+2*i}:{85+2*i}]
        s_and_b64 vcc, vcc, s[50:51]
        v_add_u32 v{T+1}, {128*i}, v{VS}
        s_nop 0
        v_cndmask_b32 v{T+1}, v{T+2}, v{T+1}, vcc
        buffer_store_dwordx2 v[{SS+2*i}:{SS+2*i+1}], v{T+1}, s[32:35], 0 offen{STSC}
        """)
    a.label("L_k2_nostat")
    stamp(a, 3); stamp_flush(a, 1, "s22", 4)
    a("s_endpgm")
    k2_side(a)
    a.label("L_k2_end")
    a("s_endpgm")
    return name

def k2_side(a):
    a.label("L_k2_side")
    a("s_sub_u32 s20, s17, 28\ns_lshl_b32 s20, s20, 3\ns_add_u32 s20, s20, s16")
    a("s_waitcnt lgkmcnt(0)")
    srd(a, 32, 12, WS_END)
    srd(a, 28, 8, 819200)
    ZP = 0
    KP = 4096
    KVB = 20480
    WOT = 24576
    WST = 69632
    PQ = 4
    T = 60
    a(f"""
    s_and_b32 s21, s20, 7
    s_lshr_b32 s23, s20, 3
    s_lshl_b32 s36, s23, 9
    s_lshl_b32 s37, s22, 6
    s_add_u32 s36, s36, s37
    v_add_u32 v1, s36, v0
    v_lshlrev_b32 v1, 4, v1
    s_mul_i32 s37, s21, {10*CSTR}
    v_add_u32 v1, s37, v1
    s_mov_b32 s38, {WS_PQ}
    """)
    for c in range(10):
        a(f"buffer_load_dwordx4 v[{PQ+4*c}:{PQ+4*c+3}], v1, s[32:35], s38 offen")
        a(f"s_add_u32 s38, s38, {CSTR}")
    a(f"""
    s_lshl_b32 s38, s22, 1
    s_mul_i32 s38, s38, 2560
    s_mul_i32 s39, s21, 320
    s_add_u32 s38, s38, s39
    s_add_u32 s38, s38, {WS_ZS}
    v_lshlrev_b32 v{T}, 2, v0
    v_add_u32 v{T+1}, 256, v{T}
    v_mov_b32 v{T+2}, 0x80000000
    v_cmp_gt_u32 vcc, 16, v0
    s_add_u32 s39, s38, 2560
    s_nop 0
    v_cndmask_b32 v{T+1}, v{T+2}, v{T+1}, vcc
    buffer_load_dword v44, v{T}, s[32:35], s38 offen
    buffer_load_dword v45, v{T+1}, s[32:35], s38 offen
    buffer_load_dword v46, v{T}, s[32:35], s39 offen
    buffer_load_dword v47, v{T+1}, s[32:35], s39 offen
    """)
    a(f"""
    s_lshl_b32 s38, s22, 6
    s_add_u32 s38, s38, s20
    s_mul_i32 s38, s38, 1664
    s_add_u32 s38, s38, {WS_KVS}
    s_add_u32 s39, s38, {32*1664}
    v_lshlrev_b32 v{T}, 4, v0
    v_add_u32 v{T+1}, 1024, v{T}
    v_cmp_gt_u32 vcc, 36, v0
    s_nop 1
    v_cndmask_b32 v{T+1}, v{T+2}, v{T+1}, vcc
    buffer_load_dwordx4 v[48:51], v{T}, s[32:35], s38 offen
    buffer_load_dwordx4 v[52:55], v{T+1}, s[32:35], s38 offen
    buffer_load_dwordx4 v[64:67], v{T}, s[32:35], s39 offen
    buffer_load_dwordx4 v[68:71], v{T+1}, s[32:35], s39 offen
    """)
    a("s_cmp_ge_u32 s22, 5\ns_cbranch_scc1 L_k2_s_nowo")
    a(f"""
    v_lshrrev_b32 v{T+3}, 4, v0
    s_mul_i32 s38, s20, 20
    v_add_u32 v{T+3}, s38, v{T+3}
    v_mul_u32_u24 v{T+3}, 1280, v{T+3}
    v_and_b32 v{T+4}, 15, v0
    v_lshl_add_u32 v{T+3}, v{T+4}, 4, v{T+3}
    s_lshl_b32 s38, s22, 8
    v_add_u32 v{T+3}, s38, v{T+3}
    s_lshl_b32 s39, s22, 13
    s_add_u32 s39, s39, {WOT}
    s_mov_b32 s38, 0
    """)
    for p in range(8):
        a(f"""
        s_add_u32 m0, s39, {1024*p}
        s_nop 0
        buffer_load_dwordx4 v{T+3}, s[28:31], s38 offen lds
        s_add_u32 s38, s38, {4*1280}
        """)
    a.label("L_k2_s_nowo")
    a(f"""
    v_mov_b32 v72, 0
    v_mov_b32 v73, 0
    v_mov_b32 v74, 0
    v_mov_b32 v75, 0
    v_lshlrev_b32 v{T}, 4, v0
    ds_write_b128 v{T}, v[72:75] offset:{KVB}
    ds_write_b128 v{T}, v[72:75] offset:{KVB+1024}
    """)
    a("s_waitcnt vmcnt(0)")
    a(f"""
    v_add_f32 v44, v44, v46
    v_add_f32 v45, v45, v47
    v_lshlrev_b32 v{T}, 2, v0
    s_mul_i32 s38, s22, 384
    v_add_u32 v{T}, s38, v{T}
    ds_write_b32 v{T}, v44 offset:{ZP}
    """)
    a(f"""
    v_cmp_gt_u32 vcc, 16, v0
    s_and_saveexec_b64 s[40:41], vcc
    ds_write_b32 v{T}, v45 offset:{ZP+256}
    s_mov_b64 exec, s[40:41]
    """)
    for k in range(4):
        a(f"v_add_f32 v{48+k}, v{48+k}, v{64+k}")
        a(f"v_add_f32 v{52+k}, v{52+k}, v{68+k}")
    a(f"""
    v_lshlrev_b32 v{T}, 4, v0
    s_mul_i32 s38, s22, 1664
    v_add_u32 v{T}, s38, v{T}
    ds_write_b128 v{T}, v[48:51] offset:{KP}
    v_cmp_gt_u32 vcc, 36, v0
    s_and_saveexec_b64 s[40:41], vcc
    ds_write_b128 v{T}, v[52:55] offset:{KP+1024}
    s_mov_b64 exec, s[40:41]
    s_waitcnt lgkmcnt(0)
    s_barrier
    """)
    a(f"v_lshlrev_b32 v{T}, 2, v0")
    for w in range(8):
        a(f"ds_read_b32 v{44+w}, v{T} offset:{ZP+384*w}")
    a("s_waitcnt lgkmcnt(0)")
    for w in range(1, 8): a(f"v_add_f32 v44, v44, v{44+w}")
    for w in range(8):
        a(f"ds_read_b32 v{46+w}, v{T} offset:{ZP+384*w+256}")
    a("s_waitcnt lgkmcnt(0)")
    a("v_mov_b32 v45, v46")
    for w in range(1, 8): a(f"v_add_f32 v45, v45, v{46+w}")
    a("s_cmp_ge_u32 s22, 2\ns_cbranch_scc1 L_k2_s_nokv")
    a(f"""
    s_lshl_b32 s38, s22, 6
    v_add_u32 v{T+1}, s38, v0
    v_lshlrev_b32 v{T+2}, 4, v{T+1}
    """)
    for w in range(8):
        a(f"ds_read_b128 v[{80+4*w}:{83+4*w}], v{T+2} offset:{KP+1664*w}")
    a("s_waitcnt lgkmcnt(0)")
    for w in range(1, 8):
        for k in range(4): a(f"v_add_f32 v{80+k}, v{80+k}, v{80+4*w+k}")
    a(f"""
    v_cvt_pk_bf16_f32 v80, v80, v81
    v_cvt_pk_bf16_f32 v81, v82, v83
    v_mul_u32_u24 v{T+2}, 13108, v{T+1}
    v_lshrrev_b32 v{T+2}, 16, v{T+2}
    v_mul_u32_u24 v{T+3}, 5, v{T+2}
    v_sub_u32 v{T+3}, v{T+1}, v{T+3}
    v_lshlrev_b32 v{T+2}, 6, v{T+2}
    v_lshl_add_u32 v{T+2}, v{T+3}, 3, v{T+2}
    v_cmp_gt_u32 vcc, 100, v{T+1}
    s_and_saveexec_b64 s[40:41], vcc
    ds_write_b64 v{T+2}, v[80:81] offset:{KVB}
    s_mov_b64 exec, s[40:41]
    """)
    a.label("L_k2_s_nokv")
    U = 80
    a(f"s_mov_b32 s44, {f32(1e-6)}")
    a(f"s_mov_b32 s46, {WS_PQN}")
    a(f"s_nop 0")
    for hh in range(4):
        for k in range(20):
            e = 20*hh + k
            if e < 64: a(f"v_readlane_b32 s{52+k}, v44, {e}")
            else: a(f"v_readlane_b32 s{52+k}, v45, {e-64}")
        for k in range(10):
            d = PQ + 10*hh + k
            a(f"v_lshlrev_b32 v{U+2*k}, 16, v{d}")
            a(f"v_and_b32 v{U+2*k+1}, 0xffff0000, v{d}")
        a(f"v_mov_b32 v{T}, s44")
        a(f"v_mov_b32 v{T+1}, 0")
        for k in range(0, 20, 2):
            a(f"v_fmac_f32 v{T}, s{52+k}, v{U+k}")
            a(f"v_fmac_f32 v{T+1}, s{53+k}, v{U+k+1}")
        a(f"v_add_f32 v{T}, v{T}, v{T+1}")
        a(f"v_rcp_f32 v{T}, v{T}")
        a("s_nop 0")
        for k in range(20): a(f"v_mul_f32 v{U+k}, v{U+k}, v{T}")
        for k in range(10):
            a(f"v_cvt_pk_bf16_f32 v{PQ+10*hh+k}, v{U+2*k}, v{U+2*k+1}")
    for c in range(10):
        a(f"buffer_store_dwordx4 v[{PQ+4*c}:{PQ+4*c+3}], v1, s[32:35], s46 offen{STSC}")
        a(f"s_add_u32 s46, s46, {CSTR}")
    a("s_waitcnt lgkmcnt(0)\ns_barrier")
    a("s_cmp_ge_u32 s22, 5\ns_cbranch_scc1 L_k2_end")
    KB = 44
    WA = 52
    D = 84
    a(f"""
    v_and_b32 v{120+0}, 15, v0
    v_lshrrev_b32 v{120+1}, 4, v0
    v_lshlrev_b32 v{120+2}, 6, v{120+0}
    v_lshl_add_u32 v{120+2}, v{120+1}, 4, v{120+2}
    ds_read_b128 v[{KB}:{KB+3}], v{120+2} offset:{KVB}
    ds_read_b128 v[{KB+4}:{KB+7}], v{120+2} offset:{KVB+1024}
    v_lshrrev_b32 v{120+3}, 2, v{120+0}
    v_lshl_add_u32 v{120+3}, v{120+1}, 3, v{120+3}
    v_lshlrev_b32 v{120+3}, 8, v{120+3}
    v_and_b32 v{120+4}, 3, v{120+0}
    v_lshl_add_u32 v{120+3}, v{120+4}, 3, v{120+3}
    s_lshl_b32 s39, s22, 13
    s_add_u32 s38, s39, {WOT}
    v_add_u32 v{120+3}, s38, v{120+3}
    """)
    for t in range(8):
        for j in range(2):
            a(f"ds_read_b64_tr_b16 v[{WA+4*t+2*j}:{WA+4*t+2*j+1}], v{120+3} offset:{t*32 + j*1024}")
        if t == 5: a("s_waitcnt lgkmcnt(8)")
    a("s_waitcnt lgkmcnt(0)")
    a(f"""
    v_and_b32 v{120+4}, 1, v{120+1}
    v_lshrrev_b32 v{120+5}, 1, v{120+1}
    v_lshl_add_u32 v{120+5}, v{120+4}, 1, v{120+5}
    v_lshlrev_b32 v{120+5}, 4, v{120+5}
    v_lshl_add_u32 v{120+5}, v{120+0}, 8, v{120+5}
    s_add_u32 s38, s39, {WST}
    v_add_u32 v{120+5}, s38, v{120+5}
    """)
    for dt in range(2):
        for t in range(8):
            a(f"v_mfma_f32_16x16x32_bf16 v[{D+4*t}:{D+4*t+3}], v[{WA+4*t}:{WA+4*t+3}], v[{KB+4*dt}:{KB+4*dt+3}], 0")
        a("s_nop 7")
        for pp in range(4):
            P = 116
            for tt in range(2):
                r = D + 4*(2*pp+tt)
                a(f"v_cvt_pk_bf16_f32 v{P+2*tt}, v{r}, v{r+1}")
                a(f"v_cvt_pk_bf16_f32 v{P+2*tt+1}, v{r+2}, v{r+3}")
            a("s_nop 1")
            a(f"v_permlane16_swap_b32 v{P}, v{P+2}")
            a(f"v_permlane16_swap_b32 v{P+1}, v{P+3}")
            a(f"ds_write_b128 v{120+5}, v[{P}:{P+3}] offset:{dt*4096 + pp*64}")
            a("s_nop 0")
    a("s_waitcnt lgkmcnt(0)")
    a(f"""
    v_lshlrev_b32 v{120+0}, 4, v0
    v_add_u32 v{120+0}, s38, v{120+0}
    v_lshrrev_b32 v{120+1}, 4, v0
    s_mul_i32 s39, s20, 20
    v_add_u32 v{120+1}, s39, v{120+1}
    v_mul_u32_u24 v{120+1}, 1280, v{120+1}
    v_and_b32 v{120+2}, 15, v0
    v_lshl_add_u32 v{120+1}, v{120+2}, 4, v{120+1}
    s_lshl_b32 s39, s22, 8
    s_add_u32 s39, s39, {WS_WP}
    v_add_u32 v{120+1}, s39, v{120+1}
    s_mov_b32 s39, 0
    """)
    for p in range(5):
        a(f"ds_read_b128 v[{44+4*p}:{47+4*p}], v{120+0} offset:{1024*p}")
    for p in range(5):
        a(f"s_waitcnt lgkmcnt({4-p})")
        a(f"buffer_store_dwordx4 v[{44+4*p}:{47+4*p}], v{120+1}, s[32:35], s39 offen{STSC}")
        a(f"s_add_u32 s39, s39, {4*1280}")
    stamp_flush(a, 1, "s22", 4)
    a("s_endpgm")

def gen_k4(a):
    name = "k4_kernel"; kn = "k4"
    kernel_head(a, name)
    a("s_cmp_ge_u32 s2, 240\ns_cbranch_scc1 L_k4_end")
    stamp(a, 0)
    a(f"s_load_dwordx2 s[4:5], s[0:1], {KA_W4}")
    a(f"s_load_dwordx2 s[6:7], s[0:1], {KA_OUT}")
    a(f"s_load_dwordx2 s[12:13], s[0:1], {KA_WS}")
    a("""
    v_lshrrev_b32 v1, 6, v0
    v_and_b32 v0, 63, v0
    s_and_b32 s16, s2, 7
    s_lshr_b32 s17, s2, 3
    v_readfirstlane_b32 s22, v1
    s_mul_i32 s18, s17, 13108
    s_lshr_b32 s18, s18, 16
    s_mul_i32 s19, s18, 5
    s_sub_u32 s19, s17, s19
    s_lshr_b32 s20, s16, 1
    s_mul_i32 s21, s20, 11
    s_lshr_b32 s23, s21, 1
    s_add_u32 s21, s21, 11
    s_lshr_b32 s21, s21, 1
    s_add_u32 s20, s23, s18
    s_cmp_ge_u32 s20, s21
    s_cbranch_scc1 L_k4_end
    s_and_b32 s21, s16, 1
    s_mul_i32 s21, s21, 5
    s_add_u32 s21, s21, s19
    s_cmp_lt_u32 s22, 4
    s_cbranch_scc1 L_k4_compute
    s_mul_i32 s49, s19, 5
    s_lshl_b32 s44, s18, 2
    s_add_u32 s49, s49, s44
    s_cmp_ge_u32 s49, 27
    s_cselect_b32 s44, 27, 0
    s_sub_u32 s49, s49, s44
    """)
    def pre():
        a("s_waitcnt lgkmcnt(0)")
        srd(a, 32, 12, WS_END)
        srd(a, 24, 12, 216*CSTR, WS_H2)
        srd(a, 28, 4, 1728*1280)
        srd(a, 48, 12, CM, WS_X1)
        srd(a, 52, 12, CM, WS_A)
    def res_issue():
        a(f"""
        s_lshl_b32 s44, s21, 18
        s_mul_i32 s45, s22, 3072
        s_add_u32 s45, s45, {RES}
        """)
        for n, sr in enumerate((48, 52)):
            for j in range(3):
                a(f"s_add_u32 m0, s45, {12288*n + 1024*j}\ns_nop 0")
                a(f"buffer_load_dwordx4 v{8+j}, s[{sr}:{sr+3}], s44 offen lds")
    loader(a, kn, 27, False, 6, res_issue, pre)
    T = 70; RX = 84; RA_ = 96; G = 108; PK = 112; VR = 120; VW = 121; VRB = 122; VOUT = 123
    def early():
        a("s_waitcnt lgkmcnt(0)")
        srd(a, 32, 12, WS_END)
        srd(a, 56, 6, CM)
        a(f"""
        v_and_b32 v{T}, 15, v{LANE}
        v_lshrrev_b32 v{T+1}, 4, v{LANE}
        s_mul_i32 s38, s20, 96
        s_mul_i32 s39, s36, 48
        s_add_u32 s38, s38, s39
        v_add_u32 v{T+2}, s38, v{T}
        v_lshlrev_b32 v{T+2}, 2, v{T+2}
        s_mov_b32 s38, {WS_G}
        """)
        for i in range(3):
            a(f"buffer_load_dword v{G+i}, v{T+2}, s[32:35], s38 offen offset:{64*i}")
        a(f"""
        v_lshrrev_b32 v{T+3}, 1, v{T+1}
        s_lshl_b32 s38, s37, 2
        v_add_u32 v{T+3}, s38, v{T+3}
        v_mul_u32_u24 v{T+3}, 1536, v{T+3}
        v_lshl_add_u32 v{T+3}, v{T}, 4, v{T+3}
        v_and_b32 v{T+4}, 1, v{T+1}
        v_lshl_add_u32 v{T+3}, v{T+4}, 3, v{T+3}
        s_mul_i32 s38, s36, 768
        s_add_u32 s38, s38, {RES}
        v_add_u32 v{VR}, s38, v{T+3}
        s_mul_i32 s38, s36, 48
        v_add_u32 v{T+5}, s38, v{T}
        v_lshrrev_b32 v{T+6}, 1, v{T+5}
        v_and_b32 v{T+6}, 7, v{T+6}
        v_lshrrev_b32 v{T+7}, 1, v{T+1}
        v_lshl_add_u32 v{T+7}, v{T+4}, 1, v{T+7}
        s_lshl_b32 s38, s37, 2
        v_add_u32 v{T+7}, s38, v{T+7}
        v_xor_b32 v{T+7}, v{T+7}, v{T+6}
        v_lshlrev_b32 v{T+7}, 4, v{T+7}
        v_lshl_add_u32 v{VW}, v{T+5}, 7, v{T+7}
        v_lshlrev_b32 v{T}, 4, v{LANE}
        s_mul_i32 s38, s22, 3072
        v_add_u32 v{VRB}, s38, v{T}
        v_lshrrev_b32 v{T+1}, 3, v{LANE}
        s_mul_i32 s38, s20, 96
        s_mul_i32 s39, s22, 24
        s_add_u32 s38, s38, s39
        v_add_u32 v{T+1}, s38, v{T+1}
        v_mul_u32_u24 v{T+1}, 1280, v{T+1}
        s_lshl_b32 s38, s21, 7
        v_add_u32 v{T+1}, s38, v{T+1}
        """)
        for j in range(3):
            a(f"""
            s_mul_i32 s38, s22, 12
            s_add_u32 s38, s38, {4*j}
            v_lshrrev_b32 v{T+2}, 4, v{LANE}
            v_add_u32 v{T+2}, s38, v{T+2}
            v_and_b32 v{T+2}, 7, v{T+2}
            v_and_b32 v{T+3}, 7, v{LANE}
            v_xor_b32 v{T+2}, v{T+2}, v{T+3}
            v_lshl_add_u32 v{VOUT+j}, v{T+2}, 4, v{T+1}
            v_add_u32 v{VOUT+j}, {j*8*1280}, v{VOUT+j}
            """)
    gemm_wg(a, kn, 27, early)
    for i in range(3):
        for tt in range(2):
            n = 2*i+tt
            a(f"ds_read_b64 v[{RX+2*n}:{RX+2*n+1}], v{VR} offset:{256*i + 3072*tt}")
            a(f"ds_read_b64 v[{RA_+2*n}:{RA_+2*n+1}], v{VR} offset:{12288 + 256*i + 3072*tt}")
    a("s_waitcnt vmcnt(0) lgkmcnt(0)")
    for i in range(3):
        P = PK + 4*(i & 1)
        a(f"v_sub_f32 v{T+8}, 1.0, v{G+i}")
        for tt in range(2):
            n = 2*i+tt
            r = acc(i, tt); x = RX + 2*n; y = RA_ + 2*n; t = T+10
            a(f"""
            v_lshlrev_b32 v{t}, 16, v{x}
            v_and_b32 v{t+1}, 0xffff0000, v{x}
            v_lshlrev_b32 v{t+2}, 16, v{x+1}
            v_and_b32 v{t+3}, 0xffff0000, v{x+1}
            v_pk_add_f32 v[{r}:{r+1}], v[{r}:{r+1}], v[{t}:{t+1}]
            v_pk_add_f32 v[{r+2}:{r+3}], v[{r+2}:{r+3}], v[{t+2}:{t+3}]
            v_lshlrev_b32 v{t}, 16, v{y}
            v_and_b32 v{t+1}, 0xffff0000, v{y}
            v_lshlrev_b32 v{t+2}, 16, v{y+1}
            v_and_b32 v{t+3}, 0xffff0000, v{y+1}
            v_mul_f32 v{t}, v{t}, v{G+i}
            v_mul_f32 v{t+1}, v{t+1}, v{G+i}
            v_mul_f32 v{t+2}, v{t+2}, v{G+i}
            v_mul_f32 v{t+3}, v{t+3}, v{G+i}
            v_fma_f32 v{r}, v{r}, v{T+8}, v{t}
            v_fma_f32 v{r+1}, v{r+1}, v{T+8}, v{t+1}
            v_fma_f32 v{r+2}, v{r+2}, v{T+8}, v{t+2}
            v_fma_f32 v{r+3}, v{r+3}, v{T+8}, v{t+3}
            v_cvt_pk_bf16_f32 v{P+2*tt}, v{r}, v{r+1}
            v_cvt_pk_bf16_f32 v{P+2*tt+1}, v{r+2}, v{r+3}
            """)
        a("s_nop 1")
        a(f"v_permlane16_swap_b32 v{P}, v{P+2}")
        a(f"v_permlane16_swap_b32 v{P+1}, v{P+3}")
        a(f"ds_write_b128 v{VW}, v[{P}:{P+3}] offset:{2048*i}")
    a("s_waitcnt lgkmcnt(0)\ns_barrier")
    for j in range(3):
        a(f"ds_read_b128 v[{84+4*j}:{87+4*j}], v{VRB} offset:{1024*j}")
    for j in range(3):
        a(f"s_waitcnt lgkmcnt({2-j})")
        a(f"buffer_store_dwordx4 v[{84+4*j}:{87+4*j}], v{VOUT+j}, s[56:59], 0 offen")
    stamp(a, 3); stamp_flush(a, 3, "s22", 4)
    a("s_endpgm")
    a.label("L_k4_end")
    a("s_endpgm")
    return name
```

```python
from common import *

SLOT = 36864
NSLOT = 4
BOFF = 20480
K3_LDS = 163840
NST = 10
DEPTH = int(os.environ.get('DEPTH', '2'))
ROT = int(os.environ.get('ROT', '1'))
def acc(i, tt): return 4*(i*4+tt)
XA, XB = 80, 100
YA, YB = 116, 136
VA, VB = 152, 153
CSA, ONESF = 160, 176
STA = 180
VO = 200
VX = 205
LANE = 255

def reads(SA, SB, ks):
    ra = [f"ds_read_b128 v[{SA+4*i}:{SA+4*i+3}], v{VA} offset:{ks*10240 + 256*i}" for i in range(5)]
    rb = [f"ds_read_b64_tr_b16 v[{SB+4*tt+2*j}:{SB+4*tt+2*j+1}], v{VB+tt} offset:{ks*8192 + j*1024}" for tt in range(4) for j in range(2)]
    return [rb[0], rb[1], ra[0], ra[1], ra[2], ra[3], ra[4], rb[2], rb[3], rb[4], rb[5], rb[6], rb[7]]
def mfmas(SA, SB):
    return [f"v_mfma_f32_16x16x32_bf16 v[{acc(i,tt)}:{acc(i,tt)+3}], v[{SB+4*tt}:{SB+4*tt+3}], v[{SA+4*i}:{SA+4*i+3}], v[{acc(i,tt)}:{acc(i,tt)+3}]"
            for tt in range(4) for i in range(5)]
def cs_mfmas(SB):
    return [f"v_mfma_f32_16x16x32_bf16 v[{CSA+4*tt}:{CSA+4*tt+3}], v[{SB+4*tt}:{SB+4*tt+3}], v[{ONESF}:{ONESF+3}], v[{CSA+4*tt}:{CSA+4*tt+3}]" for tt in range(4)]

def gen_k3(a):
    name = "k3_kernel"
    kernel_head(a, name)
    a("s_cmp_ge_u32 s2, 256\ns_cbranch_scc1 L_k3_end")
    stamp(a, 0)
    a(f"s_load_dwordx2 s[4:5], s[0:1], {KA_W3}")
    a(f"s_load_dwordx2 s[6:7], s[0:1], {KA_AX}")
    a(f"s_load_dwordx2 s[8:9], s[0:1], {KA_GW}")
    a(f"s_load_dwordx2 s[12:13], s[0:1], {KA_WS}")
    a("""
    v_lshrrev_b32 v1, 6, v0
    v_and_b32 v0, 63, v0
    s_and_b32 s16, s2, 7
    s_lshr_b32 s17, s2, 3
    v_readfirstlane_b32 s22, v1
    s_mov_b32 s23, s16
    s_cmp_eq_u32 s17, 31
    s_cbranch_scc1 L_k3_gate
    s_mul_i32 s19, s16, 31
    s_add_u32 s19, s19, s17
    s_mov_b32 s23, 8
    s_cmp_eq_u32 s19, 247
    s_cbranch_scc1 L_k3_gate
    s_cmp_lt_u32 s19, 133
    s_cbranch_scc0 L_k3_half1
    s_mul_i32 s21, s19, 9363
    s_lshr_b32 s21, s21, 16
    s_mul_i32 s20, s21, 7
    s_sub_u32 s20, s19, s20
    s_mov_b32 s49, s20
    s_branch L_k3_half_done
    """)
    a.label("L_k3_half1")
    a("""
    s_sub_u32 s19, s19, 133
    s_mul_i32 s21, s19, 10923
    s_lshr_b32 s21, s21, 16
    s_mul_i32 s20, s21, 6
    s_sub_u32 s20, s19, s20
    s_mov_b32 s49, s20
    s_add_u32 s20, s20, 7
    """)
    a.label("L_k3_half_done")
    a(f"""
    s_lshl_b32 s44, s21, 1
    s_add_u32 s49, s49, s44
    s_mul_i32 s44, s49, 6554
    s_lshr_b32 s44, s44, 16
    s_mul_i32 s44, s44, 10
    s_sub_u32 s49, s49, s44
    s_cmp_lt_u32 s21, 14
    s_cselect_b32 s18, 1, 0
    s_cselect_b32 s44, 0, 14
    s_sub_u32 s21, s21, s44
    s_cmp_lt_u32 s22, 4
    s_cbranch_scc1 L_k3_compute
    """)
    loader(a)
    compute(a)
    gate(a)
    a.label("L_k3_end")
    a("s_endpgm")
    return name

def loader(a):
    VA_, VB_ = 2, 7
    T = 11
    a("s_sub_u32 s22, s22, 4")
    a(f"""
    s_mul_i32 s36, s20, 160
    s_lshl_b32 s37, s22, 16
    v_add_u32 v{T}, s36, v0
    v_lshlrev_b32 v{T}, 4, v{T}
    v_add_u32 v{VA_}, s37, v{T}
    v_add_u32 v{VA_+1}, 0x400, v{VA_}
    v_add_u32 v{VA_+3}, {CSTR + 32*16}, v{VA_}
    v_add_u32 v{VA_+4}, {CSTR + 96*16}, v{VA_}
    v_add_u32 v{T}, 0x800, v{VA_}
    v_add_u32 v{T+1}, {(CSTR - 32*16)}, v{VA_}
    v_cmp_gt_u32 vcc, 32, v0
    s_cmp_eq_u32 s18, 1
    s_movk_i32 s15, 1280
    s_cselect_b32 s15, 3456, s15
    v_cndmask_b32 v{VA_+2}, v{T+1}, v{T}, vcc
    """)
    a(f"""
    v_lshrrev_b32 v{T}, 4, v0
    s_lshl_b32 s36, s22, 4
    v_add_u32 v{T+1}, s36, v{T}
    v_mul_lo_u32 v{T+1}, v{T+1}, s15
    s_lshl_b32 s36, s21, 8
    v_add_u32 v{T+1}, s36, v{T+1}
    v_lshlrev_b32 v{T}, 1, v{T}
    v_and_b32 v{T+2}, 15, v0
    v_xor_b32 v{T}, v{T}, v{T+2}
    s_lshl_b32 s36, s15, 2
    """)
    for j in range(4):
        if j == 2: a(f"v_xor_b32 v{T}, 8, v{T}")
        a(f"v_lshl_add_u32 v{VB_+j}, v{T}, 4, v{T+1}")
        if j < 3: a(f"v_add_u32 v{T+1}, s36, v{T+1}")
    a(f"""
    s_lshl_b32 s41, s15, 6
    s_mul_i32 s49, s49, {ROT}
    s_lshl_b32 s36, s49, 18
    s_mul_i32 s37, s49, s41
    s_mov_b32 s40, 0
    s_mul_i32 s42, s22, 5120
    s_lshl_b32 s43, s22, 12
    s_add_u32 s43, s43, {BOFF}
    s_waitcnt lgkmcnt(0)
    s_cmp_eq_u32 s18, 1
    s_cbranch_scc1 L_k3_t1
    s_add_u32 s24, s12, {WS_PQN}
    s_addc_u32 s25, s13, 0
    s_add_u32 s28, s12, {WS_WP}
    s_addc_u32 s29, s13, 0
    s_mov_b32 s30, 819200
    s_branch L_k3_t2
    """)
    a.label("L_k3_t1")
    a(f"""
    s_add_u32 s24, s12, {WS_X1}
    s_addc_u32 s25, s13, 0
    s_mov_b32 s28, s4
    s_mov_b32 s29, s5
    s_mov_b32 s30, {640*3456}
    """)
    a.label("L_k3_t2")
    a(f"s_mov_b32 s26, {CM}\ns_mov_b32 s27, {SRD3:#x}\ns_mov_b32 s31, {SRD3:#x}")
    def issue():
        a(f"""
        s_mul_i32 s38, s40, {SLOT}
        s_add_u32 s39, s38, s42
        s_mov_b32 m0, s39
        s_add_u32 s38, s38, s43
        """)
        for j in range(5):
            a(f"buffer_load_dwordx4 v{VA_+j}, s[24:27], s36 offen lds")
            if j < 4: a("s_add_u32 m0, m0, 1024\ns_nop 0")
        a("s_mov_b32 m0, s38")
        a(f"s_add_u32 s36, s36, {8*CSTR}")
        for j in range(4):
            a(f"buffer_load_dwordx4 v{VB_+j}, s[28:31], s37 offen lds")
            if j < 3: a("s_add_u32 m0, m0, 1024\ns_nop 0")
        a("s_add_u32 s37, s37, s41")
        a("s_add_u32 s40, s40, 1\ns_and_b32 s40, s40, 3")
        a("s_add_u32 s49, s49, 1\ns_cmp_eq_u32 s49, 10\ns_cselect_b32 s36, 0, s36\ns_cselect_b32 s37, 0, s37\ns_cselect_b32 s49, 0, s49")
    a("s_mov_b32 s46, 0")
    a.label("L_k3_ld_pro")
    issue()
    a(f"s_add_u32 s46, s46, 1\ns_cmp_lt_u32 s46, {DEPTH}\ns_cbranch_scc1 L_k3_ld_pro")
    a("s_mov_b32 s44, 0")
    a.label("L_k3_ld_loop")
    a(f"s_waitcnt vmcnt({9*(DEPTH-1)})\ns_barrier")
    issue()
    a(f"s_add_u32 s44, s44, 1\ns_cmp_lt_u32 s44, {NST-DEPTH}\ns_cbranch_scc1 L_k3_ld_loop")
    for i in range(DEPTH):
        a(f"s_waitcnt vmcnt({9*(DEPTH-1-i)})\ns_barrier")
    a("s_endpgm")

def compute(a):
    a.label("L_k3_compute")
    T = 208
    a(f"""
    v_mov_b32 v{LANE}, v0
    s_lshr_b32 s36, s22, 1
    s_and_b32 s37, s22, 1
    v_and_b32 v{T}, 15, v0
    v_lshrrev_b32 v{T+1}, 4, v0
    v_mul_u32_u24 v{T+2}, 2560, v{T+1}
    v_lshl_add_u32 v{T+2}, v{T}, 4, v{T+2}
    s_mul_i32 s38, s36, 1280
    v_add_u32 v{VA}, s38, v{T+2}
    v_lshrrev_b32 v{T+2}, 2, v{T}
    v_lshlrev_b32 v{T+3}, 3, v{T+1}
    v_add_u32 v{T+3}, v{T+3}, v{T+2}
    v_lshlrev_b32 v{T+3}, 8, v{T+3}
    v_and_b32 v{T+4}, 3, v{T}
    v_lshl_add_u32 v{T+3}, v{T+4}, 3, v{T+3}
    v_add_u32 v{T+3}, {BOFF}, v{T+3}
    v_and_b32 v{T+4}, 1, v{T+1}
    v_xor_b32 v{T+4}, s37, v{T+4}
    v_lshl_add_u32 v{T+3}, v{T+4}, 7, v{T+3}
    """)
    for tt in range(4):
        a(f"v_xor_b32 v{T+5}, {tt}, v{T+2}")
        a(f"v_lshl_add_u32 v{VB+tt}, v{T+5}, 5, v{T+3}")
    a(f"""
    s_mul_i32 s38, s20, 160
    s_mul_i32 s39, s36, 80
    s_add_u32 s38, s38, s39
    v_add_u32 v{T+5}, s38, v{T}
    s_waitcnt lgkmcnt(0)
    """)
    srd(a, 32, 12, WS_END)
    LD = 80
    a("s_cmp_eq_u32 s18, 1\ns_cbranch_scc0 L_k3_nostat")
    a(f"""
    v_lshlrev_b32 v{T+6}, 14, v{T+1}
    v_lshl_add_u32 v{T+6}, v{T+5}, 3, v{T+6}
    v_add_u32 v{T+6}, {WS_XST}, v{T+6}
    v_add_u32 v{T+7}, {4*16384}, v{T+6}
    v_add_u32 v{T+8}, {8*16384}, v{T+6}
    v_mov_b32 v{T+9}, 0x80000000
    v_cmp_gt_u32 vcc, 32, v{LANE}
    s_nop 1
    v_cndmask_b32 v{T+8}, v{T+9}, v{T+8}, vcc
    """)
    for i in range(5):
        for k in range(3):
            a(f"buffer_load_dwordx2 v[{LD+6*i+2*k}:{LD+6*i+2*k+1}], v{T+6+k}, s[32:35], 0 offen offset:{128*i}")
    a.label("L_k3_nostat")
    a(f"""
    v_and_b32 v{T+7}, 1, v{T+1}
    v_lshrrev_b32 v{T+8}, 1, v{T+1}
    v_lshl_add_u32 v{T+8}, v{T+7}, 1, v{T+8}
    s_lshl_b32 s38, s21, 4
    s_lshl_b32 s39, s37, 3
    s_add_u32 s38, s38, s39
    v_add_u32 v{T+8}, s38, v{T+8}
    v_lshlrev_b32 v{T+8}, 15, v{T+8}
    """)
    for i in range(5):
        a(f"""
        v_add_u32 v{T+9}, {16*i}, v{T+5}
        v_cmp_gt_u32 vcc, 0x800, v{T+9}
        v_lshl_add_u32 v{T+9}, v{T+9}, 4, v{T+8}
        v_mov_b32 v{T+10}, 0x80000000
        v_cndmask_b32 v{VO+i}, v{T+10}, v{T+9}, vcc
        """)
    a(f"""
    v_lshlrev_b32 v{T+9}, 4, v{T+1}
    s_lshl_b32 s38, s22, 8
    v_add_u32 v{VX}, s38, v{T+9}
    s_xor_b32 s38, s38, 512
    v_add_u32 v{VX+1}, s38, v{T+9}
    s_cmp_eq_u32 s18, 1
    s_mov_b32 s44, {WS_A}
    s_cselect_b32 s44, {WS_H2}, s44
    s_mov_b32 s46, {CM}
    s_cselect_b32 s46, {216*CSTR}, s46
    s_add_u32 s44, s12, s44
    s_addc_u32 s45, s13, 0
    s_mov_b32 s47, {SRD3:#x}
    s_mov_b32 s43, {4*CSTR}
    """)
    for r in range(80): a(f"v_mov_b32 v{r}, 0")
    for r in range(CSA, CSA+16): a(f"v_mov_b32 v{r}, 0")
    for r in range(ONESF, ONESF+4): a(f"v_mov_b32 v{r}, 0x3f803f80")
    a("s_cmp_eq_u32 s18, 1\ns_cbranch_scc0 L_k3_nostat2")
    a("s_waitcnt vmcnt(0)")
    SUM, SQ = 110, 115
    for i in range(5):
        a(f"v_pk_add_f32 v[{LD+6*i}:{LD+6*i+1}], v[{LD+6*i}:{LD+6*i+1}], v[{LD+6*i+2}:{LD+6*i+3}]")
    for i in range(5):
        a(f"v_pk_add_f32 v[{LD+6*i}:{LD+6*i+1}], v[{LD+6*i}:{LD+6*i+1}], v[{LD+6*i+4}:{LD+6*i+5}]")
    for i in range(5):
        a(f"v_mov_b32 v{SUM+i}, v{LD+6*i}\nv_mov_b32 v{SQ+i}, v{LD+6*i+1}")
    lane_group_sum(a, list(range(SUM, SUM+10)), 80)
    ln_finalize(a, SUM, SQ, 5, STA, "s38", "s39")
    a.label("L_k3_nostat2")
    a("s_cmp_eq_u32 s36, 0\ns_cselect_b64 vcc, -1, 0")
    a("s_mov_b32 s40, 0")
    a("s_barrier")
    stamp(a, 1)
    for r in reads(XA, XB, 0): a(r)
    a("s_waitcnt lgkmcnt(0)")
    a.label("L_k3_main")
    adv = ["s_add_u32 s40, s40, 1", "s_and_b32 s41, s40, 3", f"s_mov_b32 s42, {SLOT}", "s_cmp_eq_u32 s41, 0",
           f"s_cselect_b32 s42, {(-3*SLOT) & 0xffffffff:#x}, s42",
           f"v_add_u32 v{VA}, s42, v{VA}"] + [f"v_add_u32 v{VB+k}, s42, v{VB+k}" for k in range(4)] + [f"s_cmp_eq_u32 s40, {NST}"]
    interleave2(a, mfmas(XA, XB), reads(YA, YB, 1) + adv)
    a("s_cbranch_vccz L_k3_nocs0")
    for m in cs_mfmas(XB): a(m)
    a.label("L_k3_nocs0")
    a("s_waitcnt lgkmcnt(0)")
    a("s_cbranch_scc1 L_k3_nobar\ns_barrier")
    a.label("L_k3_nobar")
    interleave2(a, mfmas(YA, YB), reads(XA, XB, 0))
    a("s_cbranch_vccnz L_k3_nocs1")
    for m in cs_mfmas(YB): a(m)
    a.label("L_k3_nocs1")
    a("s_waitcnt lgkmcnt(0)")
    a("s_cbranch_scc0 L_k3_main")
    stamp(a, 2)
    T1, T2, PK = 80, 96, 112
    def pack_store(R):
        for tt in range(4):
            a(f"v_cvt_pk_bf16_f32 v{PK+2*tt}, v{R+4*tt}, v{R+4*tt+1}")
            a(f"v_cvt_pk_bf16_f32 v{PK+2*tt+1}, v{R+4*tt+2}, v{R+4*tt+3}")
        gidx_on(a, "s48", 1)
        a(f"v_mov_b32 v{PK+8}, v{VO}")
        gidx_off(a)
        for pp in range(2):
            P = PK + 4*pp
            a(f"v_permlane16_swap_b32 v{P}, v{P+2}")
            a(f"v_permlane16_swap_b32 v{P+1}, v{P+3}")
        a(f"buffer_store_dwordx4 v[{PK}:{PK+3}], v{PK+8}, s[44:47], 0 offen{STSC}")
        a(f"buffer_store_dwordx4 v[{PK+4}:{PK+7}], v{PK+8}, s[44:47], s43 offen{STSC}")
        a("s_add_u32 s48, s48, 1\ns_add_u32 s49, s49, 4\ns_add_u32 s50, s50, 16\ns_cmp_lt_u32 s48, 5")
    a("s_mov_b32 s48, 0\ns_mov_b32 s49, 0\ns_mov_b32 s50, 0")
    a("s_cmp_eq_u32 s18, 1\ns_cbranch_scc1 L_k3_epi_h")
    a("s_nop 4")
    a.label("L_k3_a_loop")
    gidx_on(a, "s50", 1)
    for k in range(16): a(f"v_mov_b32 v{T1+k}, v{k}")
    gidx_off(a)
    pack_store(T1)
    a("s_cbranch_scc1 L_k3_a_loop")
    stamp(a, 3); stamp_flush(a, 2, "s22", 4)
    a("s_endpgm")
    a.label("L_k3_epi_h")
    a("s_barrier")
    for tt in range(4): a(f"ds_write_b128 v{VX}, v[{CSA+4*tt}:{CSA+4*tt+3}] offset:{64*tt}")
    a("s_waitcnt lgkmcnt(0)\ns_barrier")
    for tt in range(4): a(f"ds_read_b128 v[{T1+4*tt}:{T1+4*tt+3}], v{VX+1} offset:{64*tt}")
    a("s_waitcnt lgkmcnt(0)")
    for k in range(0, 16, 2): a(f"v_pk_add_f32 v[{CSA+k}:{CSA+k+1}], v[{CSA+k}:{CSA+k+1}], v[{T1+k}:{T1+k+1}]")
    stamp(a, 5)
    ST = 124
    a.label("L_k3_h_loop")
    gidx_on(a, "s49", 1)
    for k in range(4): a(f"v_mov_b32 v{ST+k}, v{STA+k}")
    gidx_off(a)
    gelu_idx(a, list(range(16)), list(range(CSA, CSA+16)), "s50", ST, T1, T2)
    pack_store(T1)
    a("s_cbranch_scc1 L_k3_h_loop")
    stamp(a, 3); stamp_flush(a, 2, "s22", 4)
    a("s_endpgm")

def gate(a):
    a.label("L_k3_gate")
    a("s_waitcnt lgkmcnt(0)")
    srd(a, 32, 12, WS_END)
    srd(a, 24, 6, CM)
    srd(a, 28, 8, 1280)
    T = 60
    a(f"""
    s_lshl_b32 s20, s23, 3
    s_add_u32 s20, s20, s22
    v_and_b32 v{T}, 15, v0
    v_lshlrev_b32 v{T}, 4, v{T}
    v_lshrrev_b32 v{T+1}, 4, v0
    v_mul_u32_u24 v{T+2}, 1280, v{T+1}
    v_add_u32 v{T+2}, v{T+2}, v{T}
    """)
    for j in range(5):
        a(f"buffer_load_dwordx4 v[{4+4*j}:{7+4*j}], v{T}, s[28:31], 0 offen offset:{256*j}")
    a(f"s_mov_b32 s44, {f32(-LOG2E)}")
    a.label("L_k3_gate_loop")
    a("s_mul_i32 s36, s20, 5120")
    for j in range(5):
        a(f"buffer_load_dwordx4 v[{24+4*j}:{27+4*j}], v{T+2}, s[24:27], s36 offen offset:{256*j}")
    a(f"v_mov_b32 v{T+4}, 0\nv_mov_b32 v{T+5}, 0")
    a("s_waitcnt vmcnt(0)")
    for j in range(5):
        for d in range(4):
            a(f"v_dot2_f32_bf16 v{T+4+(d&1)}, v{24+4*j+d}, v{4+4*j+d}, v{T+4+(d&1)}")
    a("s_nop 2")
    a(f"v_add_f32 v{T+4}, v{T+4}, v{T+5}")
    a("s_nop 1")
    for step in ("row_ror:8", "row_ror:4", "row_ror:2", "row_ror:1"):
        a(f"v_add_f32_dpp v{T+4}, v{T+4}, v{T+4} {step} row_mask:0xf bank_mask:0xf")
        a("s_nop 1")
    a(f"""
    v_mul_f32 v{T+4}, s44, v{T+4}
    v_exp_f32 v{T+4}, v{T+4}
    s_nop 0
    v_add_f32 v{T+4}, 1.0, v{T+4}
    v_rcp_f32 v{T+4}, v{T+4}
    s_lshl_b32 s36, s20, 4
    s_add_u32 s36, s36, {WS_G}
    v_lshlrev_b32 v{T+5}, 2, v{T+1}
    buffer_store_dword v{T+4}, v{T+5}, s[32:35], s36 offen
    s_add_u32 s20, s20, 72
    s_cmp_lt_u32 s20, 512
    s_cbranch_scc1 L_k3_gate_loop
    s_endpgm
    """)
```

```python
from asmlib import *
NAME = "gated_mix__linear_attn_block__mixer_s_mlp__prompt"
KA_AX, KA_WQKV, KA_WO, KA_BX, KA_W1, KA_W2, KA_W3, KA_W4, KA_GW, KA_OUT, KA_DBG, KA_WS = [8*i for i in range(12)]
CSTR = 32768
CM   = 80 * CSTR
WS_PQ  = 0
WS_H   = CM
WS_X1  = 2 * CM
WS_PQN = 3 * CM
WS_A   = 4 * CM
WS_H2  = 5 * CM
WS_WP  = WS_H2 + 216 * CSTR
WS_KVS = WS_WP + 819200
WS_ZS  = WS_KVS + 16 * 32 * 1664
WS_G   = WS_ZS + 16 * 640 * 4
WS_XST = WS_G + 8192
WS_STAMP = WS_XST + 10 * 2048 * 8
WS_END = WS_STAMP + 4*65536 + 4*262144
SRD3 = 0x20000

def srd(a, dst, ptr, nbytes, off=0):
    if off:
        a(f"s_add_u32 s{dst}, s{ptr}, {off}")
        a(f"s_addc_u32 s{dst+1}, s{ptr+1}, 0")
    else:
        a(f"s_mov_b32 s{dst}, s{ptr}")
        a(f"s_mov_b32 s{dst+1}, s{ptr+1}")
    a(f"s_mov_b32 s{dst+2}, {nbytes}")
    a(f"s_mov_b32 s{dst+3}, {SRD3:#x}")

def kernel_head(a, name):
    a.kidx = getattr(a, "kidx", -1) + 1
    a.raw(f".globl {name}")
    a.raw(".p2align 8")
    a.raw(f".type {name},@function")
    a.raw(f"{name}:")

def kd(name, vgpr=256, sgpr=96):
    return f""".p2align 6
.amdhsa_kernel {name}
  .amdhsa_next_free_vgpr {vgpr}
  .amdhsa_next_free_sgpr {sgpr}
  .amdhsa_accum_offset {(vgpr+3)//4*4}
  .amdhsa_group_segment_fixed_size 0
  .amdhsa_kernarg_size 96
  .amdhsa_user_sgpr_count 2
  .amdhsa_user_sgpr_kernarg_segment_ptr 1
  .amdhsa_system_sgpr_workgroup_id_x 1
.end_amdhsa_kernel
"""
import struct, math
def f32(x):
    return "0x%08x" % struct.unpack("<I", struct.pack("<f", x))[0]
LOG2E = 1.4426950408889634
GC0 = -2.0 * LOG2E * math.sqrt(2.0 / math.pi)
GC1 = GC0 * 0.044715

def csel(a, dst, x, y):
    a(f"s_mov_b32 {dst}, {y}")
    a(f"s_cselect_b32 {dst}, {x}, {dst}")

import os
STAMP = os.environ.get("STAMP","0") in ("1","2")
STAMPOP = "s_memtime" if os.environ.get("STAMP","0")=="2" else "s_memrealtime"
def stamp(a, n):
    if n == 0 and DBGT: dbg_entry(a, a.kidx)
    if STAMP: a(f"{STAMPOP} s[{64+2*n}:{65+2*n}]")
def stamp_flush(a, kidx, wave_sgpr, nst, ws_srd=32, vt=250):
    if DBGT: dbg_end(a, a.kidx)
    if not STAMP: return
    a("s_waitcnt vmcnt(0)")
    a(f"{STAMPOP} s[{64+2*nst}:{65+2*nst}]")
    a("s_waitcnt lgkmcnt(0)")
    a(f"s_lshl_b32 s90, s2, 3\ns_add_u32 s90, s90, {wave_sgpr}\ns_lshl_b32 s90, s90, 5")
    a(f"s_add_u32 s90, s90, {WS_STAMP + kidx*65536}")
    a(f"v_mov_b32 v{vt}, s90")
    for n in range(7):
        a(f"v_mov_b32 v{vt+1}, s{64+2*n}")
        a(f"buffer_store_dword v{vt+1}, v{vt}, s[{ws_srd}:{ws_srd+3}], 0 offen offset:{4*n}")
        a("s_nop 0")

def lane_group_sum(a, rs, tmp):
    for op in ("v_permlane16_swap_b32", "v_permlane32_swap_b32"):
        for k, r in enumerate(rs): a(f"v_mov_b32 v{tmp+k}, v{r}")
        a("s_nop 1")
        for k, r in enumerate(rs): a(f"{op} v{tmp+k}, v{r}")
        a("s_nop 1")
        for k, r in enumerate(rs): a(f"v_add_f32 v{r}, v{r}, v{tmp+k}")
        a("s_nop 0")

STSC = os.environ.get("STSC", "")
if STSC and not STSC.startswith(" "): STSC = " " + STSC.replace("_", " ")
EXP = os.environ.get("EXP", "")

def interleave2(a, ms, fill, first=2, nfirst=None):
    k = 0
    for m in ms:
        a(m)
        for _ in range(first):
            if k < len(fill): a(fill[k]); k += 1
    while k < len(fill): a(fill[k]); k += 1

def gelu4(a, r, m, c, t, KC):
    for h in (0, 2):
        a(f"v_pk_fma_f32 v[{r+h}:{r+h+1}], v[{c+h}:{c+h+1}], v[{m}:{m+1}], v[{r+h}:{r+h+1}] op_sel_hi:[1,0,1] neg_lo:[0,1,0] neg_hi:[0,1,0]")
    for h in (0, 2):
        a(f"v_pk_mul_f32 v[{r+h}:{r+h+1}], v[{r+h}:{r+h+1}], v[{m}:{m+1}] op_sel:[0,1] op_sel_hi:[1,1]")
    for h in (0, 2):
        a(f"v_pk_mul_f32 v[{t+h}:{t+h+1}], v[{r+h}:{r+h+1}], v[{r+h}:{r+h+1}]")
    for h in (0, 2):
        a(f"v_pk_fma_f32 v[{t+h}:{t+h+1}], v[{t+h}:{t+h+1}], v[{KC}:{KC+1}], v[{KC}:{KC+1}] op_sel:[0,1,0] op_sel_hi:[1,1,0]")
    for h in (0, 2):
        a(f"v_pk_mul_f32 v[{t+h}:{t+h+1}], v[{t+h}:{t+h+1}], v[{r+h}:{r+h+1}]")
    for k in range(4): a(f"v_exp_f32 v{t+k}, v{t+k}")
    a("s_nop 0")
    for h in (0, 2):
        a(f"v_pk_add_f32 v[{t+h}:{t+h+1}], v[{t+h}:{t+h+1}], 1.0 op_sel_hi:[1,0]")
    for k in range(4): a(f"v_rcp_f32 v{t+k}, v{t+k}")
    a("s_nop 0")
    for h in (0, 2):
        a(f"v_pk_mul_f32 v[{r+h}:{r+h+1}], v[{r+h}:{r+h+1}], v[{t+h}:{t+h+1}]")

def gelu_n(a, rs, ms, cs, t, KC):
    n = len(rs)
    G = range(n)
    for i in G:
        for h in (0, 2):
            r, m, c = rs[i], ms[i], cs[i]
            a(f"v_pk_fma_f32 v[{r+h}:{r+h+1}], v[{c+h}:{c+h+1}], v[{m}:{m+1}], v[{r+h}:{r+h+1}] op_sel_hi:[1,0,1] neg_lo:[0,1,0] neg_hi:[0,1,0]")
    for i in G:
        for h in (0, 2):
            r, m = rs[i], ms[i]
            a(f"v_pk_mul_f32 v[{r+h}:{r+h+1}], v[{r+h}:{r+h+1}], v[{m}:{m+1}] op_sel:[0,1] op_sel_hi:[1,1]")
    for i in G:
        for h in (0, 2):
            r = rs[i]; tt = t + 4*i
            a(f"v_pk_mul_f32 v[{tt+h}:{tt+h+1}], v[{r+h}:{r+h+1}], v[{r+h}:{r+h+1}]")
    for i in G:
        for h in (0, 2):
            tt = t + 4*i
            a(f"v_pk_fma_f32 v[{tt+h}:{tt+h+1}], v[{tt+h}:{tt+h+1}], v[{KC}:{KC+1}], v[{KC}:{KC+1}] op_sel:[0,1,0] op_sel_hi:[1,1,0]")
    for i in G:
        for h in (0, 2):
            r = rs[i]; tt = t + 4*i
            a(f"v_pk_mul_f32 v[{tt+h}:{tt+h+1}], v[{tt+h}:{tt+h+1}], v[{r+h}:{r+h+1}]")
    for i in G:
        for k in range(4): a(f"v_exp_f32 v{t+4*i+k}, v{t+4*i+k}")
    if n == 1: a("s_nop 0")
    for i in G:
        for h in (0, 2):
            tt = t + 4*i
            a(f"v_pk_add_f32 v[{tt+h}:{tt+h+1}], v[{tt+h}:{tt+h+1}], 1.0 op_sel_hi:[1,0]")
    for i in G:
        for k in range(4): a(f"v_rcp_f32 v{t+4*i+k}, v{t+4*i+k}")
    if n == 1: a("s_nop 0")
    for i in G:
        for h in (0, 2):
            r = rs[i]; tt = t + 4*i
            a(f"v_pk_mul_f32 v[{r+h}:{r+h+1}], v[{r+h}:{r+h+1}], v[{tt+h}:{tt+h+1}]")

def phi_n(a, regs, t, sL, sE):
    n = len(regs)
    for k, r in enumerate(regs): a(f"v_min_f32 v{t+k}, 0, v{r}")
    for k, r in enumerate(regs): a(f"v_mul_f32 v{t+k}, {sL}, v{t+k}")
    for k, r in enumerate(regs): a(f"v_exp_f32 v{t+k}, v{t+k}")
    for k, r in enumerate(regs): a(f"v_max_f32 v{r}, 0, v{r}")
    for k, r in enumerate(regs): a(f"v_add_f32 v{t+k}, {sE}, v{t+k}")
    for k, r in enumerate(regs): a(f"v_add_f32 v{r}, v{r}, v{t+k}")

def idx_copy(a, dst, src, n, sidx):
    a(f"s_set_gpr_idx_on {sidx}, 0x1")
    a("s_nop 0")
    for k in range(n): a(f"v_mov_b32 v{dst+k}, v{src+k}")
    a("s_set_gpr_idx_off")

BSTAMP = os.environ.get("BSTAMP","0")=="1"
def bstamp(a, idx_sgpr, vreg=200):
    if BSTAMP:
        a(f"s_memtime s[92:93]\ns_waitcnt lgkmcnt(0)\nv_mov_b32 v{vreg+2}, s92\nv_cmp_eq_u32 vcc, {idx_sgpr}, v0\ns_nop 1\nv_cndmask_b32 v{vreg}, v{vreg}, v{vreg+2}, vcc")
def bstamp_flush(a, kidx, wave_sgpr, ws_srd=32, vreg=200):
    if BSTAMP:
        a(f"s_lshl_b32 s90, s2, 3\ns_add_u32 s90, s90, {wave_sgpr}\ns_lshl_b32 s90, s90, 7")
        a(f"s_add_u32 s90, s90, {WS_STAMP + 4*65536 + kidx*262144}")
        a(f"v_lshlrev_b32 v{vreg+1}, 2, v0\nv_add_u32 v{vreg+1}, s90, v{vreg+1}")
        a(f"v_cmp_gt_u32 vcc, 32, v0\ns_and_saveexec_b64 s[94:95], vcc")
        a(f"buffer_store_dword v{vreg}, v{vreg+1}, s[{ws_srd}:{ws_srd+3}], 0 offen")
        a("s_mov_b64 exec, s[94:95]")

def gidx_on(a, sidx, mode):
    a(f"s_set_gpr_idx_on {sidx}, {mode:#x}")
    a("s_nop 0")
def gidx_off(a):
    a("s_set_gpr_idx_off")

def phi_idx(a, accs, sidx, T1, T2, vL, vZ, sEps):
    n = len(accs)
    gidx_on(a, sidx, 1)
    for k, r in enumerate(accs):
        a(f"v_mul_f32 v{T1+k}, v{r}, v{vL}")
        a(f"v_max_f32 v{T2+k}, v{r}, v{vZ}")
    gidx_off(a)
    for k in range(n): a(f"v_exp_f32_e64 v{T1+k}, v{T1+k} clamp")
    for k in range(0, n, 2): a(f"v_pk_add_f32 v[{T1+k}:{T1+k+1}], v[{T1+k}:{T1+k+1}], {sEps} op_sel_hi:[1,0]")
    for k in range(0, n, 2): a(f"v_pk_add_f32 v[{T2+k}:{T2+k+1}], v[{T2+k}:{T2+k+1}], v[{T1+k}:{T1+k+1}]")

def gelu_idx(a, accs, css, sidx, ST, T1, T2):
    n = len(accs)
    gidx_on(a, sidx, 4)
    for k, r in enumerate(accs): a(f"v_fma_f32 v{T1+k}, v{css[k]}, v{ST}, v{r}")
    gidx_off(a)
    P = lambda b, k: f"v[{b+k}:{b+k+1}]"
    S01 = f"v[{ST}:{ST+1}]"; S23 = f"v[{ST+2}:{ST+3}]"
    for k in range(0, n, 2): a(f"v_pk_mul_f32 {P(T2,k)}, {P(T1,k)}, {P(T1,k)}")
    for k in range(0, n, 2): a(f"v_pk_fma_f32 {P(T2,k)}, {P(T2,k)}, {S23}, {S23} op_sel:[0,1,0] op_sel_hi:[1,1,0]")
    for k in range(0, n, 2): a(f"v_pk_mul_f32 {P(T2,k)}, {P(T2,k)}, {P(T1,k)}")
    for k in range(n): a(f"v_exp_f32 v{T2+k}, v{T2+k}")
    for k in range(0, n, 2): a(f"v_pk_fma_f32 {P(T2,k)}, {P(T2,k)}, {S01}, {S01} op_sel:[0,1,1] op_sel_hi:[1,1,1]")
    for k in range(n): a(f"v_rcp_f32 v{T2+k}, v{T2+k}")
    for k in range(0, n, 2): a(f"v_pk_mul_f32 {P(T1,k)}, {P(T1,k)}, {P(T2,k)}")

def ln_finalize(a, SUM, SQ, n, R, sA, sB):
    a(f"s_mov_b32 {sA}, {f32(-1.0/640)}")
    a(f"s_mov_b32 {sB}, {f32(1.0/640)}")
    for j in range(n): a(f"v_mul_f32 v{R+4*j}, {sA}, v{SUM+j}")
    for j in range(n): a(f"v_mul_f32 v{R+4*j+1}, {sB}, v{SQ+j}")
    a(f"s_mov_b32 {sA}, {f32(1e-5)}")
    for j in range(n): a(f"v_fma_f32 v{R+4*j+1}, -v{R+4*j}, v{R+4*j}, v{R+4*j+1}")
    for j in range(n): a(f"v_add_f32 v{R+4*j+1}, {sA}, v{R+4*j+1}")
    for j in range(n): a(f"v_rsq_f32 v{R+4*j+2}, v{R+4*j+1}")
    for j in range(n): a(f"v_sqrt_f32 v{R+4*j+1}, v{R+4*j+1}")
    a(f"s_mov_b32 {sA}, {f32(GC1)}")
    a(f"s_mov_b32 {sB}, {f32(GC0)}")
    for j in range(n): a(f"v_mul_f32 v{R+4*j+3}, v{R+4*j+2}, v{R+4*j+2}")
    for j in range(n): a(f"v_mul_f32 v{R+4*j+3}, v{R+4*j+3}, v{R+4*j+2}")
    for j in range(n): a(f"v_mul_f32 v{R+4*j+3}, {sA}, v{R+4*j+3}")
    for j in range(n): a(f"v_mul_f32 v{R+4*j+2}, {sB}, v{R+4*j+2}")

def dot2(acc, x, y):
    if os.environ.get("DOT2C","0")=="1": return f"v_dot2c_f32_bf16 v{acc}, v{x}, v{y}"
    return f"v_dot2_f32_bf16 v{acc}, v{x}, v{y}, v{acc}"

DBGT = os.environ.get("DBGT","0")=="1"
def dbg_entry(a, k):
    if not DBGT: return
    L = a.newlabel("dbge")
    a(f"s_load_dwordx2 s[80:81], s[0:1], {KA_DBG}")
    a("s_memrealtime s[84:85]")
    a("s_waitcnt lgkmcnt(0)")
    a(f"s_add_u32 s80, s80, {512*(3-k)}\ns_addc_u32 s81, s81, 0\ns_mov_b32 s82, 256\ns_mov_b32 s83, {SRD3:#x}")
    a(f"s_cmp_lt_u32 s2, 8\ns_cbranch_scc0 {L}")
    a(f"s_not_b32 s84, s84\nv_mov_b32 v240, s84\nv_mov_b32 v241, {8*k}")
    a("s_mov_b64 s[86:87], exec\ns_mov_b64 exec, 1")
    a("buffer_atomic_umax v240, v241, s[80:83], 0 offen")
    a("s_mov_b64 exec, s[86:87]")
    a.label(L)
def dbg_end(a, k):
    if not DBGT: return
    L = a.newlabel("dbgx")
    a("s_waitcnt vmcnt(0)")
    a("s_memrealtime s[84:85]\ns_waitcnt lgkmcnt(0)")
    a(f"s_lshr_b32 s85, s2, 3\ns_and_b32 s85, s85, 3\ns_cmp_eq_u32 s85, 0\ns_cbranch_scc0 {L}")
    a(f"v_mov_b32 v240, s84\nv_mov_b32 v241, {8*k+4}")
    a("s_mov_b64 exec, 1")
    a("buffer_atomic_umax v240, v241, s[80:83], 0 offen")
    a.label(L)
```
